```python
import torch

def _softmax(x, axis=-1):
    return torch.softmax(x, dim=axis)

def _gelu(x):
    return torch.nn.functional.gelu(x, approximate='tanh')

def _silu(x):
    return torch.nn.functional.silu(x)

def _sigmoid(x):
    return torch.sigmoid(x)

def _layernorm(x, axis=-1, eps=1e-05):
    m = x.mean(dim=axis, keepdim=True)
    v = x.var(dim=axis, keepdim=True, unbiased=False)
    return (x - m) / torch.sqrt(v + eps)

def _scatter_add(tgt, idx, src, axis=0):
    return tgt.clone().index_add_(axis, idx, src)

def _segment_sum(src, seg, n):
    out = torch.zeros((n,) + src.shape[1:], dtype=src.dtype)
    return out.index_add_(0, seg, src)

def _pad(x, pw):
    flat = tuple((v for pair in reversed(pw) for v in pair))
    return torch.nn.functional.pad(x, flat)
kernel_name = 'standalone__varlen_attn_packed__ragged'

def setup_inputs():

    _w = lambda a: (lambda t: t.to(torch.bfloat16) if t.is_floating_point() else t)(torch.as_tensor(a))
    cu = torch.tensor([0, 828, 1660, 3299, 3744], dtype=torch.int64)
    T, H, D = (int(cu[-1]), 16, 128)
    return {'q': _w((lambda *s: torch.randn(*s, dtype=torch.bfloat16) * 0.8)(T, H, D)), 'k': _w((lambda *s: torch.randn(*s, dtype=torch.bfloat16) * 0.8)(T, H, D)), 'v': _w((lambda *s: torch.randn(*s, dtype=torch.bfloat16) * 0.05)(T, H, D)), 'cu': _w(cu)}

def reference(q, k, v, cu):
    T, H, D = q.shape
    out = torch.zeros_like(q)
    scale = D ** (-0.5)
    outs = []
    for i in range(len(cu) - 1):
        s, e = (int(cu[i]), int(cu[i + 1]))
        qi, ki, vi = (q[s:e].clone(), k[s:e].clone(), v[s:e].clone())
        p = _softmax(torch.einsum('qhd,khd->hqk', qi, ki) * scale, axis=-1)
        outs.append(torch.einsum('hqk,khd->qhd', p, vi))
    return torch.concatenate(outs, axis=0)
```

```python
import os
CU = [0, 828, 1660, 3299, 3744]
H = 16
ROWB = 4096
LEN = [CU[i+1] - CU[i] for i in range(4)]
NT = [(l + 63) // 64 for l in LEN]

def group_desc(seq, head, qt, a, b, mode, roles=(0, 0), share=None):
    s0, s1 = CU[seq], CU[seq+1]
    nt = NT[seq]; rem = LEN[seq] - 64 * (nt - 1)
    n = b - a
    assert n >= 2
    if b == nt:
        first, lo, hi = nt - 1, 0, rem
    else:
        first, lo, hi = b - 1, 0, 64
    if share is not None:
        lo, hi = share
    hoff = head * 256
    return [ (s0 + qt * 64) * ROWB + hoff, s1 * ROWB, (s0 + first * 64) * ROWB + hoff, (s0 + a * 64) * ROWB + hoff,
             n | (mode << 8) | (lo << 16) | (hi << 24), roles[0], roles[1], 0 ]

def pack(wgs):
    table = []
    for segs in wgs:
        assert len(segs) <= 4
        ent = []
        for i, (g0, g1) in enumerate(segs):
            g0 = list(g0); g1 = list(g1)
            assert (g0[4] & 0xffff) == (g1[4] & 0xffff)
            fl = 1 if i + 1 < len(segs) else 0
            g0[7] = fl; g1[7] = fl
            ent += g0 + g1
        ent += [0] * (64 - len(ent))
        table += ent
    return table, len(wgs)

def simple():
    jobs = []
    for seq in (2, 0, 1, 3):
        for qg in range((NT[seq] + 3) // 4):
            for head in range(H):
                jobs.append((seq, head, qg))
    wgs = []
    for seq, head, qg in jobs:
        g0 = group_desc(seq, head, qg * 4, 0, NT[seq], 0)
        g1 = group_desc(seq, head, qg * 4 + 2, 0, NT[seq], 0)
        wgs.append([(g0, g1)])
    return pack(wgs)

def build_table():
    return simple()

class Planner:
    def __init__(self):
        self.nslot = 0
    def slots(self, k):
        s = self.nslot; self.nslot += k
        return list(range(s, s + k))

def role(kind, slot=0):
    return kind | (slot << 4)

def segA(seq, head, qg, a, b, kinds=None):
    kinds = kinds or [0, 0, 0, 0]
    return (group_desc(seq, head, qg * 4, a, b, 0, kinds[0:2]), group_desc(seq, head, qg * 4 + 2, a, b, 0, kinds[2:4]))

def segB_split(P, seq, head, qt):
    nt = NT[seq]; rem = LEN[seq] - 64 * (nt - 1)
    sl = P.slots(2)
    rc = [role(2, sl[0]), role(2, sl[1])]; rp = [role(1, sl[0]), role(1, sl[1])]
    if nt % 2 == 0:
        h = nt // 2
        return (group_desc(seq, head, qt, h, nt, 1, rc), group_desc(seq, head, qt, 0, h, 1, rp))
    else:
        h = (nt - 1) // 2
        g0 = group_desc(seq, head, qt, h, nt, 1, rc, share=(0, 32))
        g1 = group_desc(seq, head, qt, h, nt, 1, rp, share=(32, rem))
        g1[3] = (CU[seq]) * ROWB + head * 256
        return (g0, g1)

def cutA(P, seq, head, qg, k):
    sl = P.slots(4)
    prod = segA(seq, head, qg, 0, k, [role(1, s) for s in sl])
    cons = segA(seq, head, qg, k, NT[seq], [role(2, s) for s in sl])
    return prod, cons

def plan_v1():
    P = Planner()
    perx = []
    for x in range(8):
        heads = [x, x + 8]
        A26 = [(2, h, qg) for h in heads for qg in range(6)]
        A13 = [(s, h, qg) for h in heads for s in (0, 1) for qg in range(3)]
        B13 = [segB_split(P, 2, h, 24) for h in heads]
        B7 = [segB_split(P, s, h, 12) for h in heads for s in (0, 1)]
        A7 = [segA(3, h, qg, 0, 7) for h in heads for qg in range(2)]
        bins = []
        prods = []; conss = []
        for j in A26:
            p, c = cutA(P, *j, 7)
            prods.append(p); conss.append(c)
        sevens = B7 + A7
        first = []
        for i in range(8): first.append([prods[i], sevens[i]])
        cut9 = [cutA(P, *A13[i], 4) for i in range(4)]
        later = []
        for i in range(4): later.append([prods[8 + i], cut9[i][1]])
        full13 = [segA(*A13[i], 0, 13) for i in range(4, 12)] + B13
        for i in range(4): first.append([cut9[i][0], full13[i]])
        rest = [[f] for f in full13[4:]]
        bins = first + rest[:4] + later + rest[4:] + [[c] for c in conss]
        assert len(bins) == 34, len(bins)
        perx.append(bins)
    nb = len(perx[0])
    wgs = [perx[i % 8][i // 8] for i in range(8 * nb)]
    return pack(wgs)

def build_table():
    return {"simple": simple, "v1": plan_v1}[os.environ.get("PLAN", "v1")]()

import random, math
def anneal(jobs, x, xm, iters=300000, seed=0, maxseg=2, base=20, NB=32):
    rnd = random.Random(seed)
    nj = len(jobs)
    cut = [0]*nj
    b1 = [b % NB for b in range(nj)]
    b2 = [rnd.randrange(NB) for _ in range(nj)]
    def costs():
        c = [0.0]*NB; ns=[0]*NB; nc=[0]*NB
        for j,(t,n,f,m) in enumerate(jobs):
            if cut[j]:
                c[b1[j]] += (n-cut[j])*f + xm; ns[b1[j]]+=1; nc[b1[j]]+=1
                c[b2[j]] += cut[j]*f; ns[b2[j]]+=1
            else:
                c[b1[j]] += n*f + m; ns[b1[j]]+=1
                if m: nc[b1[j]]+=1
        for b in range(NB): c[b] += x*max(0,ns[b]-1)
        pen = sum(max(0,s-maxseg) for s in ns)*50 + sum(max(0,s-1) for s in nc)*50
        tp = [0.0]*NB
        for j in range(nj):
            if cut[j]:
                tp[b2[j]] += cut[j] + x
                if tp[b2[j]] - x + 1.5 > c[b1[j]]: pen += 5
        return c, pen
    def obj():
        c,pen = costs()
        return sum(math.exp((v-base)/0.5) for v in c)*(1+pen)
    cur = obj(); best = (cur, cut[:], b1[:], b2[:])
    for it in range(iters):
        T = 1.0*(1-it/iters)**2+1e-3
        j = rnd.randrange(nj); old = (cut[j], b1[j], b2[j]); k=None
        r = rnd.random()
        if r < 0.2: b1[j] = rnd.randrange(NB)
        elif r < 0.4: b2[j] = rnd.randrange(NB)
        elif r < 0.75:
            if jobs[j][0]=='A':
                cut[j] = max(0, min(jobs[j][1]-2, cut[j] + rnd.choice([-1,1,-1,1,-2,2,-4,4])))
                if cut[j]==1: cut[j]=rnd.choice([0,2])
        else:
            k = rnd.randrange(nj); oldk=(cut[k],b1[k],b2[k])
            rr = rnd.random()
            if rr<0.5: b1[j], b1[k] = b1[k], b1[j]
            elif rr<0.75: b2[j], b2[k] = b2[k], b2[j]
            else: b1[j], b2[k] = b2[k], b1[j]
        bad = (cut[j] and b1[j]==b2[j]) or (k is not None and cut[k] and b1[k]==b2[k])
        new = obj() if not bad else 1e300
        if new < cur or rnd.random() < math.exp(-(math.log(new)-math.log(cur))/T): cur = new
        else:
            cut[j], b1[j], b2[j] = old
            if k is not None: cut[k],b1[k],b2[k]=oldk
        if cur < best[0]: best = (cur, cut[:], b1[:], b2[:])
    cur, cut, b1, b2 = best
    c,pen = costs()
    return max(c), pen, cut, b1, b2

def best_anneal(x, xm, bp, seeds=6):
    import json
    cache = os.path.join(os.path.dirname(os.path.abspath(__file__)), f"plan_{x}_{xm}_{bp}.json")
    if os.path.exists(cache): return json.load(open(cache))
    jobs = [('A',26,1.0,0)]*12 + [('B',13,bp,xm)]*2+ [('B',13,bp,0)]*2 + [('A',13,1.0,0)]*12 + [('A',7,1.0,0)]*4
    res = [anneal(jobs, x, xm, seed=s) for s in range(seeds)]
    res = [r for r in res if r[1] == 0]
    r = min(res, key=lambda r: r[0])
    json.dump(r, open(cache, "w"))
    return r

def plan_sa():
    x = float(os.environ.get("SX", "4.5")); xm = float(os.environ.get("SXM", "0.8")); bp = float(os.environ.get("SBP", "1.2"))
    m, pen, cut, b1, b2 = best_anneal(x, xm, bp)
    P = Planner()
    perx = []
    for xc in range(8):
        heads = [xc, xc + 8]
        A26 = [(2, h, qg) for h in heads for qg in range(6)]
        A13 = [(s, h, qg) for h in heads for s in (0, 1) for qg in range(3)]
        A7 = [(3, h, qg) for h in heads for qg in range(2)]
        Bc = []; Bp = []
        for h in heads:
            sl = P.slots(2)
            Bp.append((group_desc(2, h, 24, 0, 13, 1, [role(1, s) for s in sl]), group_desc(0, h, 12, 0, 13, 1)))
            Bc.append((group_desc(2, h, 24, 13, 26, 1, [role(2, s) for s in sl]), group_desc(1, h, 12, 0, 13, 1)))
        alljobs = A26 + [None]*4 + A13 + A7
        prod = [[] for _ in range(32)]; fin = [[] for _ in range(32)]; cons = [[] for _ in range(32)]
        dep = [set() for _ in range(32)]
        for j, jb in enumerate(alljobs):
            if 12 <= j < 14: cons[b1[j]].append(Bc[j-12]); dep[b1[j]].add(b1[j+2]); continue
            if 14 <= j < 16: fin[b1[j]].append(Bp[j-14]); continue
            if cut[j]:
                p, c = cutA(P, *jb, cut[j])
                prod[b2[j]].append(p); cons[b1[j]].append(c); dep[b1[j]].add(b2[j])
            else:
                fin[b1[j]].append(segA(*jb, 0, NT[jb[0]]))
        lvl = [0]*32
        for _ in range(32):
            for b in range(32):
                for d in dep[b]: lvl[b] = max(lvl[b], lvl[d] + 1)
        order = sorted(range(32), key=lambda b: lvl[b])
        bins = [prod[b] + fin[b] + cons[b] for b in order]
        assert all(len(b) >= 1 for b in bins)
        perx.append(bins)
    wgs = [perx[i % 8][i // 8] for i in range(256)]
    return pack(wgs)

def build_table():
    return {"simple": simple, "v1": plan_v1, "sa": plan_sa}[os.environ.get("PLAN", "sa")]()
```

```python
import sys, os, math
from sched import build_table

NAME = "standalone__varlen_attn_packed__ragged"
ROWB = 4096
TILEB = 64 * ROWB
HUGE = 0x40000000
SLOTB = 17408
CSCALE = (128 ** -0.5) * math.log2(math.e)
THR = float(2 ** 24)

import struct
def f2u(x):
    return struct.unpack("<I", struct.pack("<f", x))[0]

DIAG = int(os.environ.get("DIAG", "0"))

def O_(blk, db):  return (blk * 4 + db) * 16
def Q_(blk, ks):  return 128 + (blk * 8 + ks) * 4
def RING(i):      return 192 + (i % 16) * 4
def S_(buf, blk, kb): return ((buf * 2 + blk) * 2 + kb) * 16
def NEGM(blk):    return 128 + blk * 16
VKA = 160
VVA = 168
VDK = 172
VDV = 176
VQO = 180
VLANE16 = 181
VL = 182
VTS = 184
VHI4 = 186
VT = 188
def a4(b): return f"a[{b}:{b+3}]"
def a2(b): return f"a[{b}:{b+1}]"
def a16(b): return f"a[{b}:{b+15}]"
def v4(b): return f"v[{b}:{b+3}]"
def v2(b): return f"v[{b}:{b+1}]"
def v16(b): return f"v[{b}:{b+15}]"

SQ, SK, SV, SO, SW, SD = "s[4:7]", "s[8:11]", "s[12:15]", "s[16:19]", "s[20:23]", "s[24:27]"
sWAVE = "s28"; sDOFF = "s29"
sQOFF, sNREC, sFIRST, sNEXT, sINFO, sROLE0, sROLE1, sFLAGS = [f"s{32+i}" for i in range(8)]
sKN = "s40"; sVN = "s41"; sCNT = "s42"; sLDSD = "s43"; sTHR = "s44"; sCHK = "s45"
sC0 = "s46"; sC1 = "s47"
sT0 = "s48"; sT1 = "s49"; sROWOFF = "s50"; sG = "s51"; sLO = "s52"; sSPAN = "s53"; sMODE = "s54"; sROLE = "s55"
sT2 = "s56"; sT3 = "s57"
sPEND = "s80"; sPOLLAT = "s81"; VFLAG = 187; VFADDR = 253
sOQ = "s58"; sOROLE = "s59"; sOFLAGS = "s30"; sSTAMP = "s31"
EPI = 131072
sRET = "s[60:61]"; sTBL = "s[62:63]"

KBUF = [0, 16384]; VBUF = [32768, 49152]

class G:
    def __init__(self):
        self.lines = []
    def e(self, s):
        self.lines.append("    " + s)
    def c(self, s):
        self.lines.append("    ; " + s)
    def label(self, l):
        self.lines.append(l + ":")
    def nop(self, n):
        while n > 0:
            k = min(n, 16)
            self.e(f"s_nop {k-1}")
            n -= k

def cost(ins):
    op = ins.split()[0]
    if op in ("v_exp_f32", "v_rcp_f32"): return 8
    if op.startswith("buffer_load") and ins.rstrip().endswith("lds"): return DMACOST
    return 4
DMACOST = 16

def softmax_stream(buf, kb):
    out = []
    for blk in (0, 1):
        b = S_(buf, blk, kb)
        for h in (0, 1):
            r = b + 8 * h
            for i in range(8):
                out.append(f"v_exp_f32 v{r+i}, v{r+i}")
                if i >= 1:
                    j = i - 1
                    out += add_ins(blk, kb, h, r, j)
                    if j % 2 == 1:
                        k = j // 2
                        out.append(f"v_cvt_pk_bf16_f32 v{r+k}, v{r+2*k}, v{r+2*k+1}")
            out += ["TRAIL"] + add_ins(blk, kb, h, r, 7) + [f"v_cvt_pk_bf16_f32 v{r+3}, v{r+6}, v{r+7}"]
    res = []
    i = 0
    while i < len(out):
        if out[i] == "TRAIL":
            tr = out[i+1:i+3]
            if i + 3 < len(out):
                res.append(out[i+3]); res += tr; i += 4
            else:
                res.append("s_nop 0"); res += tr; i += 3
        else:
            res.append(out[i]); i += 1
    return res

def add_ins(blk, kb, h, r, j):
    ts = VTS + blk
    if kb == 0 and h == 0:
        if j == 0: return []
        if j == 1: return [f"v_add_f32 v{ts}, v{r}, v{r+1}"]
    return [f"v_add_f32 v{ts}, v{ts}, v{r+j}"]

def k_read(c, kbuf):
    kb, ks = c // 8, c % 8
    return [f"ds_read_b128 {a4(RING(c))}, v{VKA+ks} offset:{KBUF[kbuf] + kb*8192}"]
def v_read(c, vbuf):
    g = c - 16
    kk, db = g // 4, g % 4
    return [f"ds_read_b64_tr_b16 {a2(RING(c)+2*u)}, v{VVA+db} offset:{VBUF[vbuf] + kk*4096 + u*2048}" for u in (0, 1)]

def qk_mfmas(nb, czero=False):
    m = []
    for kb in (0, 1):
        for ks in range(8):
            c = kb * 8 + ks
            for blk in (0, 1):
                d = S_(nb, blk, kb)
                if ks == 0:
                    ci = "0" if czero else v16(NEGM(blk))
                else:
                    ci = v16(d)
                m.append((c, f"v_mfma_f32_32x32x16_bf16 {v16(d)}, {a4(RING(c))}, {a4(Q_(blk, ks))}, {ci}"))
    return m
def pv_mfmas(cb):
    m = []
    for kk in range(4):
        for db in range(4):
            c = 16 + kk * 4 + db
            for blk in (0, 1):
                p = S_(cb, blk, kk // 2) + 8 * (kk % 2)
                m.append((c, f"v_mfma_f32_32x32x16_bf16 {a16(O_(blk, db))}, {a4(RING(c))}, {v4(p)}, {a16(O_(blk, db))}"))
    return m

class LdsTrack:
    def __init__(self, outstanding=None):
        self.q = list(outstanding or [])
    def issue(self, item):
        self.q.append(item)
    def need(self, items):
        last = -1
        for i, it in enumerate(self.q):
            if it in items: last = i
        if last < 0: return None
        n = len(self.q) - 1 - last
        self.q = self.q[last+1:]
        return n
    def clear(self):
        self.q = []

def distribute(stream, gaps, g0, g1, budget=24):
    free = [max(0, budget - sum(cost(x if isinstance(x, str) else (x[1] if len(x) > 1 else "s_a b")) for x in gaps[g])) for g in range(g0, g1 + 1)]
    tot_free = sum(free); tot = sum(cost(x) for x in stream)
    ratio = tot / tot_free if tot_free else 1.0
    cumf = 0; cums = 0; i = 0
    for g in range(g0, g1 + 1):
        cumf += free[g - g0] * ratio
        while i < len(stream) and (cums + cost(stream[i]) / 2 <= cumf + 1e-9 or g == g1):
            gaps[g].append(stream[i]); cums += cost(stream[i]); i += 1
    assert i == len(stream)

def emit_gapped(g, mfmas, gaps, trk, waitpairs=True):
    seen = set()
    for i, (c, m) in enumerate(mfmas):
        if c not in seen:
            items = {c}
            if waitpairs and c % 2 == 0: items.add(c + 1)
            if not (waitpairs and c % 2 == 1 and (c - 1) in seen):
                n = trk.need(items)
                if n is not None:
                    g.e(f"s_waitcnt lgkmcnt({n})")
            else:
                n = trk.need({c})
                if n is not None:
                    g.e(f"s_waitcnt lgkmcnt({n})")
            seen.add(c)
        g.e(m)
        for f in gaps[i]:
            if isinstance(f, tuple):
                if f[0] == 'rd':
                    trk.issue(f[2]); g.e(f[1])
                elif f[0] == 'bar':
                    g.e("s_waitcnt vmcnt(0) lgkmcnt(0)"); g.e("s_barrier"); trk.clear()
            else:
                g.e(f)

LOOK = 6
BARGAP = 22

def dma_list(mode, which, buf, soff):
    srd = SK if which == 'K' else SV
    vo = VDK if which == 'K' else VDV
    base = (KBUF if which == 'K' else VBUF)[buf]
    out = [f"s_add_u32 m0, {sLDSD}, {base}"]
    for i in range(4):
        out.append(f"buffer_load_dwordx4 v{vo+i}, {srd}, {soff} offen offset:{1024*i} lds")
    if mode == 1:
        out.append(f"s_add_u32 {sT1}, {soff}, {16*ROWB}")
        out.append(f"s_add_u32 m0, {sLDSD}, {base+4096}")
        for i in range(4):
            out.append(f"buffer_load_dwordx4 v{vo+i}, {srd}, {sT1} offen offset:{1024*i} lds")
    return out

def place_dmas(gaps, dl, g0, step):
    g = g0
    pend = []
    for ins in dl:
        if ins.startswith("s_"):
            pend.append(ins)
        else:
            for p in pend: gaps[max(g - 1, 0)].append(p)
            pend = []
            gaps[g].append(ins); g += step
    return g

POLLS = []
def phase1(g, mode, cb, stream, trk, check=True):
    nb = 1 - cb
    m1 = qk_mfmas(nb)
    gaps = [[] for _ in range(32)]
    for c in range(LOOK, 16):
        gaps[2 * (c - LOOK)].append(('rd', k_read(c, nb)[0], c))
    for c in range(16, 16 + LOOK):
        r = v_read(c, cb)
        gaps[2 * (c - LOOK)].append(('rd', r[0], c)); gaps[2 * (c - LOOK) + 1].append(('rd', r[1], c))
    pre = [f"s_cmp_ge_u32 {sCNT}, 2", f"s_cselect_b32 {sT0}, {sKN}, {HUGE}"]
    dl = pre + dma_list(mode, 'K', cb, sT0) + dma_list(mode, 'V', nb, sVN)
    gend = place_dmas(gaps, dl, 1, 2 if mode == 0 else 1)
    gaps[min(gend, 29)] += [f"s_mov_b32 {sVN}, {sKN}", f"s_add_u32 {sKN}, {sKN}, {TILEB}"]
    pid = len(POLLS); POLLS.append(pid)
    gaps[min(gend + 1, 29)] += [f"s_cmp_eq_u32 {sCNT}, {sPOLLAT}", f"s_cbranch_scc1 L_pollstub_{pid}", f"L_pollback_{pid}:"]
    if check:
        distribute(stream, gaps, 0, 29)
        gaps[30] += [f"v_max_f32 v{VT}, v{VTS}, v{VTS+1}"]
        gaps[31] += [f"v_cmp_nge_f32 vcc, {sTHR}, v{VT}"]
    else:
        distribute(stream, gaps, 0, 30)
        gaps[31] += ["s_nop 0"]
    emit_gapped(g, m1, gaps, trk)

def loop_body(g, mode, cb, tag):
    nb = 1 - cb
    trk = LdsTrack(list(range(LOOK)))
    phase1(g, mode, cb, softmax_stream(cb, 1), trk)
    g.e(f"s_cbranch_vccnz L_stub_{tag}")
    g.label(f"L_back_{tag}")
    m2 = pv_mfmas(cb)
    gaps = [[] for _ in range(32)]
    for c in range(16 + LOOK, 32):
        r = v_read(c, cb)
        gi = 2 * (c - 16 - LOOK)
        gaps[gi].append(('rd', r[0], c)); gaps[gi + 1].append(('rd', r[1], c))
    gaps[BARGAP].append(('bar',))
    for c in range(LOOK):
        gaps[min(31, BARGAP + 1 + (c * (31 - BARGAP)) // LOOK)].append(('rd', k_read(c, cb)[0], c))
    gaps[31] += [f"s_add_u32 {sCHK}, {sCHK}, {TILEB}", f"s_sub_u32 {sCNT}, {sCNT}, 1", f"s_cmp_eq_u32 {sCNT}, 0"]
    st = [f"v_add_f32 v{VL}, v{VL}, v{VTS}", f"v_add_f32 v{VL+1}, v{VL+1}, v{VTS+1}"] + softmax_stream(nb, 0)
    distribute(st, gaps, 0, 30)
    emit_gapped(g, m2, gaps, trk)
    assert trk.q == list(range(LOOK)), trk.q

R1 = [VT + 4, VT + 6]; R2 = [VT + 8, VT + 10]
VEW = 248; VER = 249; VES = 251

def pv_mfmas_db(cb):
    m = []
    for db in range(4):
        for kk in range(4):
            c = 16 + db * 4 + kk
            for blk in (0, 1):
                p = S_(cb, blk, kk // 2) + 8 * (kk % 2)
                m.append((c, f"v_mfma_f32_32x32x16_bf16 {a16(O_(blk, db))}, {a4(RING(c))}, {v4(p)}, {a16(O_(blk, db))}"))
    return m
def v_read_db(c, vbuf):
    g_ = c - 16
    db, kk = g_ // 4, g_ % 4
    return [f"ds_read_b64_tr_b16 {a2(RING(c)+2*u)}, v{VVA+db} offset:{VBUF[vbuf] + kk*4096 + u*2048}" for u in (0, 1)]

def tail_pv(g, cb, kind, trk):
    nb = 1 - cb
    mf = pv_mfmas_db(cb)
    st = []
    n = 0
    for db in range(4):
        md = 8 * (db + 1)
        for blk in (0, 1):
            for k in (0, 2):
                t = 208 + (n % 2) * 8
                d = 224 + (n % 4) * 4
                ad = 200 + (n % 2) * 2
                u = 240 + (n % 2) * 2
                gi = (db * 2 + blk) * 2 + k // 2
                n += 1
                o = O_(blk, db) + 4 * k
                for r in range(8): st.append((md, f"v_accvgpr_read_b32 v{t+r}, a{o+r}"))
                if kind == 1:
                    for r in range(4): st.append((md, f"v_cvt_pk_bf16_f32 v{d+r}, v{t+2*r}, v{t+2*r+1}"))
                    st.append((md, f"s_add_u32 {sT3}, {sT2}, {(gi//4)*4096}"))
                    st.append((md, f"buffer_store_dwordx4 {v4(d)}, v{VLANE16}, {SW}, {sT3} offen offset:{(gi%4)*1024} sc1"))
                    continue
                ch = 4 * (db % 2) + k
                st.append((md, f"v_xor_b32 v{ad}, {ch<<4}, v{VEW}"))
                st.append((md, f"v_xor_b32 v{ad+1}, {(ch+1)<<4}, v{VEW}"))
                for r in range(8): st.append((md, f"v_mul_f32 v{t+r}, v{t+r}, v{R1[blk]}"))
                if kind == 2:
                    st.append((md, ('vm', gi)))
                    b = S_(nb, 0, 0) + 4 * gi
                    for r in range(4):
                        st.append((md, f"v_lshlrev_b32 v{u}, 16, v{b+r}"))
                        st.append((md, f"v_and_b32 v{u+1}, 0xffff0000, v{b+r}"))
                        st.append((md, f"v_fmac_f32 v{t+2*r}, v{u}, v{R2[blk]}"))
                        st.append((md, f"v_fmac_f32 v{t+2*r+1}, v{u+1}, v{R2[blk]}"))
                for r in range(4): st.append((md, f"v_cvt_pk_bf16_f32 v{d+r}, v{t+2*r}, v{t+2*r+1}"))
                st.append((md, ('lds', f"w{n}a", f"ds_write_b64 v{ad}, {v2(d)} offset:{blk*4096}")))
                st.append((md, ('lds', f"w{n}b", f"ds_write_b64 v{ad+1}, {v2(d+2)} offset:{blk*4096}")))
        if kind == 1: continue
        if db % 2 == 1:
            h = db // 2
            rb = S_(nb, 0, 0) + h * 32
            for i in range(8):
                st.append((md, ('lds', f"r{h}{i}", f"ds_read_b128 {v4(rb+4*i)}, v{VER + (i%2)} offset:{1024*i}")))
            for i in range(8):
                st.append((md, f"s_add_u32 {sT3}, {sOQ}, {i*8*ROWB + h*128}"))
                st.append((md, ('need', f"r{h}{i}")))
                st.append((md, f"buffer_store_dwordx4 {v4(rb+4*i)}, v{VES}, {SO}, {sT3} offen"))
    vreads = {}
    for c in range(16 + LOOK, 32):
        gi = 2 * (c - 16 - LOOK)
        r = v_read_db(c, cb)
        vreads.setdefault(gi, []).append((c, r[0])); vreads.setdefault(gi + 1, []).append((c, r[1]))
    cnt = [0]
    last_of = {}
    def E(x):
        g.e(x); cnt[0] += 1
    fi = 0
    seen = set()
    def emit_filler():
        nonlocal fi
        md, ins = st[fi]
        dist = cnt[0] - last_of[md]
        if dist < 13:
            E(f"s_nop {min(15, 13 - dist - 1)}"); cnt[0] += 13 - dist - 1
        if isinstance(ins, tuple):
            if ins[0] == 'lds': trk.issue(ins[1]); E(ins[2])
            elif ins[0] == 'need':
                nn = trk.need({ins[1]})
                if nn is not None: E(f"s_waitcnt lgkmcnt({min(nn,15)})")
            elif ins[0] == 'vm':
                E(f"s_waitcnt vmcnt({15 - ins[1] + nstores[0]})")
        else:
            if ins.startswith("buffer_store"): nstores[0] += 1
            E(ins)
        fi += 1
    nstores = [0]
    for i, (c, m) in enumerate(mf):
        if c not in seen:
            nn = trk.need({c})
            if nn is not None: E(f"s_waitcnt lgkmcnt({min(nn,15)})")
            seen.add(c)
        E(m)
        last_of[i + 1] = cnt[0]
        for (cc, r) in vreads.get(i, []):
            trk.issue(cc); E(r)
        k = 0
        while fi < len(st) and st[fi][0] <= i - 1 and k < 5:
            emit_filler(); k += 1
    while fi < len(st): emit_filler()

def tail(g, cb, tag):
    nb = 1 - cb
    g.e("s_waitcnt lgkmcnt(0)")
    pre_reads = [(c, r) for c in range(16, 16 + LOOK) for r in v_read_db(c, cb)]
    for c, r in pre_reads: g.e(r)
    for ins in softmax_stream(cb, 1): g.e(ins)
    g.e(f"v_max_f32 v{VT}, v{VTS}, v{VTS+1}")
    g.e("s_nop 0")
    g.e(f"v_cmp_nge_f32 vcc, {sTHR}, v{VT}")
    g.e(f"s_cbranch_vccnz L_stub_{tag}")
    g.label(f"L_back_{tag}")
    g.e(f"v_add_f32 v{VL}, v{VL}, v{VTS}"); g.e(f"v_add_f32 v{VL+1}, v{VL+1}, v{VTS+1}")
    g.e(f"s_mov_b32 {sOQ}, {sQOFF}")
    g.e(f"s_mov_b32 {sOROLE}, {sROLE}")
    g.e(f"s_mov_b32 {sOFLAGS}, {sFLAGS}")
    g.e(f"s_bitcmp1_b32 {sFLAGS}, 0")
    g.e(f"s_cbranch_scc0 L_nopf_{tag}")
    g.e(f"s_mov_b64 s[32:33], s[64:65]"); g.e(f"s_mov_b64 s[34:35], s[66:67]")
    g.e(f"s_mov_b64 s[36:37], s[68:69]"); g.e(f"s_mov_b64 s[38:39], s[70:71]")
    g.e(f"s_call_b64 {sRET}, L_setup")
    g.label(f"L_nopf_{tag}")
    g.e(f"s_and_b32 {sT0}, {sOROLE}, 3")
    g.e(f"s_lshr_b32 {sT1}, {sOROLE}, 4")
    g.e(f"s_mul_i32 {sT2}, {sT1}, {SLOTB}")
    g.e(f"s_cmp_eq_u32 {sT0}, 1")
    g.e(f"s_cbranch_scc1 L_prod_{tag}")
    g.e(f"s_call_b64 {sRET}, L_epiaddr")
    g.e(f"s_cmp_eq_u32 {sT0}, 2")
    g.e(f"s_cbranch_scc1 L_cons_{tag}")
    mk = lambda: LdsTrack([c for c, r in pre_reads])
    crosshalf(g, "v_add_f32", [VL, VL + 1], [VT, VT + 1])
    for blk in (0, 1): g.e(f"v_rcp_f32 v{R1[blk]}, v{VL+blk}")
    g.e("s_nop 1")
    for blk in (0, 1): g.e(f"v_mov_b32 v{R1[blk]+1}, v{R1[blk]}")
    tail_pv(g, cb, 0, mk())
    g.e("s_branch L_epi_done")
    g.label(f"L_prod_{tag}")
    g.e(f"v_mov_b32 v{VT}, v{NEGM(0)}"); g.e(f"v_mov_b32 v{VT+1}, v{NEGM(1)}")
    g.e(f"v_mov_b32 v{VT+2}, v{VL}"); g.e(f"v_mov_b32 v{VT+3}, v{VL+1}")
    g.e(f"s_add_u32 {sT3}, {sT2}, 16384")
    g.e(f"buffer_store_dwordx4 {v4(VT)}, v{VLANE16}, {SW}, {sT3} offen sc1")
    tail_pv(g, cb, 1, mk())
    g.e(f"s_add_u32 {sPEND}, {sT1}, 1")
    g.e("s_branch L_epi_done")
    g.label(f"L_cons_{tag}")
    g.e(f"s_and_b32 {sT1}, {sT1}, 31")
    g.label(f"L_poll_{tag}")
    g.e(f"v_readfirstlane_b32 {sT3}, v{VFLAG}")
    g.e(f"s_lshr_b32 {sT3}, {sT3}, {sT1}")
    g.e(f"s_bitcmp1_b32 {sT3}, 0")
    g.e(f"s_cbranch_scc1 L_polled_{tag}")
    g.e("s_sleep 2")
    g.e(f"buffer_load_dword v{VFLAG}, v{VFADDR}, {SD}, 0 offen sc1")
    g.e("s_waitcnt vmcnt(0)")
    g.e(f"s_branch L_poll_{tag}")
    g.label(f"L_polled_{tag}")
    g.e(f"s_add_u32 {sT3}, {sT2}, 16384")
    g.e(f"buffer_load_dwordx4 {v4(232)}, v{VLANE16}, {SW}, {sT3} offen sc1")
    for gi in range(16):
        if gi % 4 == 0: g.e(f"s_add_u32 {sT3}, {sT2}, {(gi//4)*4096}")
        g.e(f"buffer_load_dwordx4 {v4(S_(nb, 0, 0) + 4*gi)}, v{VLANE16}, {SW}, {sT3} offen offset:{(gi%4)*1024} sc1")
    g.e("s_waitcnt vmcnt(16)")
    F1 = [236, 237]; F2 = [238, 239]
    for blk in (0, 1):
        g.e(f"v_min_f32 v{VT}, v{NEGM(blk)}, v{232+blk}")
        g.e(f"v_sub_f32 v{F1[blk]}, v{VT}, v{NEGM(blk)}")
        g.e(f"v_sub_f32 v{F2[blk]}, v{VT}, v{232+blk}")
        g.e(f"v_exp_f32 v{F1[blk]}, v{F1[blk]}")
        g.e(f"v_exp_f32 v{F2[blk]}, v{F2[blk]}")
        g.e("s_nop 0")
        g.e(f"v_mul_f32 v{VL+blk}, v{VL+blk}, v{F1[blk]}")
        g.e(f"v_fmac_f32 v{VL+blk}, v{234+blk}, v{F2[blk]}")
    crosshalf(g, "v_add_f32", [VL, VL + 1], [VT, VT + 1])
    for blk in (0, 1): g.e(f"v_rcp_f32 v{VL+blk}, v{VL+blk}")
    g.e("s_nop 1")
    for blk in (0, 1):
        g.e(f"v_mul_f32 v{R1[blk]}, v{F1[blk]}, v{VL+blk}")
        g.e(f"v_mul_f32 v{R1[blk]+1}, v{F1[blk]}, v{VL+blk}")
        g.e(f"v_mul_f32 v{R2[blk]}, v{F2[blk]}, v{VL+blk}")
        g.e(f"v_mul_f32 v{R2[blk]+1}, v{F2[blk]}, v{VL+blk}")
    tail_pv(g, cb, 2, mk())
    g.e("s_branch L_epi_done")

def publish(g, tag):
    g.e(f"s_cmp_eq_u32 {sPEND}, 0")
    g.e(f"s_cbranch_scc1 L_nopub_{tag}")
    g.e(f"s_sub_u32 {sPEND}, {sPEND}, 1")
    g.e(f"s_lshr_b32 {sT2}, {sPEND}, 5")
    g.e(f"s_lshl_b32 {sT2}, {sT2}, 2")
    g.e(f"s_and_b32 {sT3}, {sPEND}, 31")
    g.e(f"s_lshl_b32 {sT3}, 1, {sT3}")
    g.e(f"v_mov_b32 v{VT+4}, {sT2}")
    g.e(f"v_mov_b32 v{VT+5}, {sT3}")
    g.e(f"s_mov_b32 {sPEND}, 0")
    g.e("s_mov_b64 exec, 1")
    g.e(f"buffer_atomic_or v{VT+5}, v{VT+4}, {SD}, 0 offen")
    g.e("s_mov_b64 exec, -1")
    g.label(f"L_nopub_{tag}")

def rowmax(g, buf, blk, dst):
    regs = [S_(buf, blk, kb) + r for kb in (0, 1) for r in range(16)]
    g.e(f"v_max3_f32 v{dst}, v{regs[0]}, v{regs[1]}, v{regs[2]}")
    i = 3
    while i + 1 < len(regs):
        g.e(f"v_max3_f32 v{dst}, v{dst}, v{regs[i]}, v{regs[i+1]}"); i += 2
    if i < len(regs):
        g.e(f"v_max_f32 v{dst}, v{dst}, v{regs[i]}")

def crosshalf(g, op, regs, tmp):
    for r, t in zip(regs, tmp): g.e(f"v_mov_b32 v{t}, v{r}")
    g.e("s_nop 1")
    for r, t in zip(regs, tmp): g.e(f"v_permlane32_swap_b32 v{r}, v{t}")
    g.e("s_nop 1")
    for r, t in zip(regs, tmp): g.e(f"{op} v{r}, v{r}, v{t}")

def slow_path(g, cb):
    nb = 1 - cb
    g.label(f"L_slow_{cb}")
    g.nop(20)
    KT = 192
    for kb in (0, 1):
        g.e(f"s_add_u32 {sT2}, {sCHK}, {kb*32*ROWB}")
        for ks in range(8):
            g.e(f"buffer_load_dwordx4 {v4(KT+4*ks)}, v{VQO}, {SK}, {sT2} offen offset:{ks*32}")
        g.e("s_waitcnt vmcnt(0)")
        for ks in range(8):
            for blk in (0, 1):
                d = S_(cb, blk, kb)
                ci = v16(NEGM(blk)) if ks == 0 else v16(d)
                g.e(f"v_mfma_f32_32x32x16_bf16 {v16(d)}, {v4(KT+4*ks)}, {a4(Q_(blk, ks))}, {ci}")
        g.nop(4)
    g.nop(20)
    dl = [224, 225]; fa = [228, 229]
    for blk in (0, 1): rowmax(g, cb, blk, dl[blk])
    crosshalf(g, "v_max_f32", dl, [226, 227])
    for blk in (0, 1):
        g.e(f"v_max_f32 v{dl[blk]}, 0, v{dl[blk]}")
    for blk in (0, 1):
        g.e(f"v_exp_f32 v{fa[blk]}, -v{dl[blk]}")
    for blk in (0, 1):
        for r in range(16): g.e(f"v_sub_f32 v{NEGM(blk)+r}, v{NEGM(blk)+r}, v{dl[blk]}")
        for buf in (0, 1):
            for kb in (0, 1):
                for r in range(16):
                    x = S_(buf, blk, kb) + r
                    g.e(f"v_sub_f32 v{x}, v{x}, v{dl[blk]}")
        g.e(f"v_mul_f32 v{VL+blk}, v{VL+blk}, v{fa[blk]}")
        for db in range(4):
            for r0 in range(0, 16, 4):
                for r in range(4): g.e(f"v_accvgpr_read_b32 v{232+r}, a{O_(blk, db)+r0+r}")
                for r in range(4): g.e(f"v_mul_f32 v{232+r}, v{232+r}, v{fa[blk]}")
                for r in range(4): g.e(f"v_accvgpr_write_b32 a{O_(blk, db)+r0+r}, v{232+r}")
    for ins in softmax_stream(cb, 0) + softmax_stream(cb, 1): g.e(ins)
    g.nop(4)
    g.e(f"s_setpc_b64 {sRET}")

def stamp(g, idx):
    if not DIAG: return
    g.e("s_memtime s[96:97]")
    g.e("s_waitcnt lgkmcnt(0)")
    g.e("v_mov_b32 v254, s96")
    g.e(f"s_lshl_b32 s98, s2, 2")
    g.e(f"s_add_u32 s98, s98, {sWAVE}")
    g.e(f"s_lshl_b32 s98, s98, 7")
    g.e(f"s_add_u32 s98, s98, {sSTAMP}")
    g.e(f"s_add_u32 {sSTAMP}, {sSTAMP}, 4")
    g.e("v_mov_b32 v255, 0")
    g.e(f"buffer_store_dword v254, v255, {SW}, s98 offen")

def gen():
    table, nwg = build_table()
    g = G()
    hdr = open(os.path.join(os.path.dirname(os.path.abspath(__file__)), "..", "cdna_kernels", NAME + ".s.ref")).read().split("\n")
    head = [l for l in hdr if l.startswith(";") and "@launch" not in l]
    L = g.lines
    L += head
    L.append(f"; @launch grid=({nwg},1,1) block=(256,1,1) lds=163840")
    L.append('.amdgcn_target "amdgcn-amd-amdhsa--gfx950"')
    L.append(".text")
    L.append(f".globl {NAME}_kernel")
    L.append(".p2align 8")
    L.append(f".type {NAME}_kernel,@function")
    g.label(f"{NAME}_kernel")
    g.e(f"s_cmp_ge_u32 s2, {nwg}")
    g.e("s_cbranch_scc1 L_end")
    g.e("s_load_dwordx8 s[64:71], s[0:1], 0")
    g.e("s_load_dwordx4 s[72:75], s[0:1], 32")
    g.e("s_load_dwordx2 s[76:77], s[0:1], 48")
    g.e("s_getpc_b64 s[78:79]")
    g.label("L_pc0")
    g.e("v_lshlrev_b32 v2, 7, v0")
    g.e("v_min_u32 v3, L_codeend-L_pc0-4, v2")
    g.e("global_load_dword v250, v3, s[78:79]")
    g.e("v_add_u32 v2, 0x8000, v2")
    g.e("v_min_u32 v2, L_codeend-L_pc0-4, v2")
    g.e("global_load_dword v251, v2, s[78:79]")
    g.e("v_lshrrev_b32 v1, 6, v0")
    g.e(f"s_getpc_b64 {sTBL}")
    g.e("s_add_u32 s62, s62, L_table@rel32@lo+4")
    g.e("s_addc_u32 s63, s63, L_table@rel32@hi+12")
    g.e(f"v_readfirstlane_b32 {sWAVE}, v1")
    g.e("v_and_b32 v0, 63, v0")
    g.e(f"s_lshl_b32 {sDOFF}, s2, 8")
    g.e(f"s_lshr_b32 {sT0}, {sWAVE}, 1")
    g.e(f"s_lshl_b32 {sT0}, {sT0}, 5")
    g.e(f"s_add_u32 {sDOFF}, {sDOFF}, {sT0}")
    g.e(f"s_load_dwordx8 s[32:39], {sTBL}, {sDOFF}")
    g.e(f"s_mov_b32 {sTHR}, {f2u(THR):#x}")
    g.e(f"s_mov_b32 {sC0}, {f2u(CSCALE):#x}")
    g.e(f"s_mov_b32 {sC1}, {f2u(CSCALE):#x}")
    g.e("v_and_b32 v1, 31, v0")
    g.e("v_lshrrev_b32 v2, 5, v0")
    g.e("v_lshrrev_b32 v3, 4, v0")
    g.e("v_and_b32 v4, 15, v0")
    g.e(f"v_lshlrev_b32 v{VQO}, 12, v1")
    g.e(f"v_lshl_add_u32 v{VQO}, v2, 4, v{VQO}")
    g.e(f"v_lshlrev_b32 v{VLANE16}, 4, v0")
    g.e(f"v_lshlrev_b32 v{VHI4}, 2, v2")
    for i in range(4):
        g.e(f"v_add_u32 v5, {4*i}, v3")
        g.e(f"v_xor_b32 v6, v4, v5")
        g.e(f"v_lshlrev_b32 v7, 12, v5")
        g.e(f"v_lshl_add_u32 v{VDK+i}, v6, 4, v7")
        g.e(f"v_lshlrev_b32 v6, 2, v3")
        g.e(f"v_xor_b32 v6, v4, v6")
        g.e(f"v_lshl_add_u32 v{VDV+i}, v6, 4, v7")
        if i:
            g.e(f"v_subrev_u32 v{VDK+i}, {1024*i}, v{VDK+i}")
            g.e(f"v_subrev_u32 v{VDV+i}, {1024*i}, v{VDV+i}")
    g.e("s_waitcnt lgkmcnt(0)")
    for srd, src, nrec in ((4, 64, None), (8, 66, None), (12, 68, None), (16, 72, None), (20, 76, 268435456), (24, 74, 256)):
        g.e(f"s_mov_b32 s{srd}, s{src}")
        g.e(f"s_and_b32 s{srd+1}, s{src+1}, 0xffff")
        g.e(f"s_mov_b32 s{srd+2}, {nrec if nrec else 0}")
        g.e(f"s_mov_b32 s{srd+3}, 0x00020000")
    g.e(f"s_mov_b32 {sSTAMP}, 0x8000000")
    g.e(f"s_mov_b32 {sPEND}, 0")
    stamp(g, 0)
    g.e(f"s_call_b64 {sRET}, L_setup")
    g.e("s_branch L_seg")
    g.label("L_setup")
    for srd in (4, 8, 12): g.e(f"s_mov_b32 s{srd+2}, {sNREC}")
    g.e(f"s_and_b32 {sT0}, {sWAVE}, 1")
    g.e(f"s_cmp_eq_u32 {sT0}, 1")
    g.e(f"s_cselect_b32 {sROLE}, {sROLE1}, {sROLE0}")
    g.e(f"s_lshl_b32 {sT1}, {sT0}, 18")
    g.e(f"s_add_u32 {sQOFF}, {sQOFF}, {sT1}")
    g.e(f"s_and_b32 {sCNT}, {sINFO}, 0xff")
    g.e(f"s_bfe_u32 {sMODE}, {sINFO}, 0x80008")
    g.e(f"s_bfe_u32 {sLO}, {sINFO}, 0x80010")
    g.e(f"s_lshr_b32 {sSPAN}, {sINFO}, 24")
    g.e(f"s_sub_u32 {sSPAN}, {sSPAN}, {sLO}")
    g.e(f"s_lshl_b32 {sT1}, {sWAVE}, 4")
    g.e(f"s_lshl_b32 {sT2}, {sT0}, 5")
    g.e(f"s_lshr_b32 {sT3}, {sWAVE}, 1")
    g.e(f"s_lshl_b32 {sT3}, {sT3}, 16")
    g.e(f"s_cmp_eq_u32 {sMODE}, 0")
    g.e(f"s_cselect_b32 {sT1}, {sT1}, {sT2}")
    g.e(f"s_cselect_b32 {sG}, 0, {sT3}")
    g.e(f"s_lshl_b32 {sROWOFF}, {sT1}, 12")
    g.e(f"s_lshl_b32 {sLDSD}, {sT1}, 8")
    g.e(f"s_add_u32 {sLDSD}, {sLDSD}, {sG}")
    g.e(f"s_add_u32 {sFIRST}, {sFIRST}, {sROWOFF}")
    g.e(f"s_add_u32 {sVN}, {sNEXT}, {sROWOFF}")
    g.e(f"s_add_u32 {sKN}, {sVN}, {TILEB}")
    g.e(f"s_sub_u32 {sCHK}, {sNEXT}, {TILEB}")
    g.e(f"s_cmp_eq_u32 {sMODE}, 0")
    g.e("s_cbranch_scc0 L_setB")
    def dma(mode, which, buf, soff):
        for ins in dma_list(mode, which, buf, soff):
            g.e(ins)
            if "m0" in ins: g.e("s_nop 0")
    for mode in (0, 1):
        if mode == 1: g.label("L_setB")
        dma(mode, 'K', 0, sFIRST)
        for blk in (0, 1):
            g.e(f"s_add_u32 {sT2}, {sQOFF}, {blk*32*ROWB}")
            for ks in range(8):
                g.e(f"buffer_load_dwordx4 {a4(Q_(blk, ks))}, v{VQO}, {SQ}, {sT2} offen offset:{ks*32}")
        dma(mode, 'K', 1, sVN)
        g.e(f"s_setpc_b64 {sRET}")
    g.label("L_seg")
    g.e(f"s_mov_b32 s18, {sNREC}")
    g.e(f"s_add_u32 {sDOFF}, {sDOFF}, 64")
    g.e(f"s_load_dwordx8 s[64:71], {sTBL}, {sDOFF}")
    g.e("s_barrier")
    g.e(f"s_cmp_eq_u32 {sMODE}, 0")
    g.e("s_cbranch_scc0 L_vB")
    dma(0, 'V', 0, sFIRST)
    g.e("s_branch L_vJ")
    g.label("L_vB")
    dma(1, 'V', 0, sFIRST)
    g.label("L_vJ")
    g.e(f"v_lshrrev_b32 v0, 4, v{VLANE16}")
    g.e("v_and_b32 v1, 31, v0")
    g.e("v_lshrrev_b32 v2, 5, v0")
    g.e("v_and_b32 v4, 15, v0")
    g.e(f"v_lshlrev_b32 v5, 8, v1")
    g.e(f"v_add_u32 v5, {sG}, v5")
    for ks in range(8):
        g.e(f"v_add_u32 v6, {2*ks}, v2")
        g.e(f"v_xor_b32 v6, v6, v4")
        g.e(f"v_lshl_add_u32 v{VKA+ks}, v6, 4, v5")
    g.e("v_lshrrev_b32 v3, 2, v4")
    g.e("v_lshl_add_u32 v5, v2, 2, v3")
    g.e("v_lshlrev_b32 v5, 8, v5")
    g.e(f"v_add_u32 v5, {sG}, v5")
    g.e("v_and_b32 v6, 1, v0")
    g.e("v_lshl_add_u32 v5, v6, 3, v5")
    g.e("v_bfe_u32 v6, v0, 1, 1")
    g.e("v_bfe_u32 v7, v0, 4, 1")
    g.e("v_lshl_add_u32 v6, v7, 1, v6")
    g.e("v_lshl_add_u32 v5, v6, 4, v5")
    for db in range(4):
        g.e(f"v_xor_b32 v6, {db}, v3")
        g.e(f"v_lshl_add_u32 v{VVA+db}, v6, 6, v5")
    for r in range(4): g.e(f"v_mov_b32 v{8+r}, 0")
    g.e(f"v_mov_b32 v{VL}, 0"); g.e(f"v_mov_b32 v{VL+1}, 0")
    g.e(f"s_lshr_b32 {sT2}, {sROLE}, 9")
    g.e(f"s_lshl_b32 {sT2}, {sT2}, 2")
    g.e(f"v_mov_b32 v{VFADDR}, {sT2}")
    g.e(f"v_mov_b32 v{VFLAG}, 0")
    g.e(f"s_and_b32 {sT2}, {sROLE}, 3")
    g.e(f"s_cmp_eq_u32 {sT2}, 2")
    g.e(f"s_cselect_b32 {sPOLLAT}, 1, 0xffff")
    for i in range(8): g.e(f"v_mfma_f32_32x32x16_bf16 {a16(16*i)}, v[8:11], v[8:11], 0")
    g.e(f"s_cmp_eq_u32 {sMODE}, 0")
    g.e("s_cbranch_scc0 L_qB")
    for mode in (0, 1):
        nd = 8 if mode == 0 else 16
        if mode == 1: g.label("L_qB")
        g.e(f"s_waitcnt vmcnt({16+nd})")
        g.e("s_barrier")
        for c in range(16): g.e(k_read(c, 0)[0])
        for blk in (0, 1):
            for ks in range(8):
                i = blk * 8 + ks
                g.e(f"s_waitcnt vmcnt({15-i+nd})")
                x = 64 + (i % 2) * 4
                for r in range(4):
                    t = 72 + 2 * r + (i % 2) * 8
                    g.e(f"v_accvgpr_read_b32 v{t+1}, a{Q_(blk, ks)+r}")
                for r in range(4):
                    t = 72 + 2 * r + (i % 2) * 8
                    g.e(f"v_lshlrev_b32 v{t}, 16, v{t+1}")
                    g.e(f"v_and_b32 v{t+1}, 0xffff0000, v{t+1}")
                    g.e(f"v_mul_f32 v{t}, {sC0}, v{t}")
                    g.e(f"v_mul_f32 v{t+1}, {sC0}, v{t+1}")
                    g.e(f"v_cvt_pk_bf16_f32 v{x+r}, v{t}, v{t+1}")
                for r in range(4):
                    g.e(f"v_accvgpr_write_b32 a{Q_(blk, ks)+r}, v{x+r}")
                if i == 0: g.e("s_waitcnt lgkmcnt(0)")
                for kb in (0, 1):
                    d = S_(0, blk, kb)
                    g.e(f"v_mfma_f32_32x32x16_bf16 {v16(d)}, {a4(RING(kb*8+ks))}, {v4(x)}, {'0' if ks == 0 else v16(d)}")
        if mode == 0: g.e("s_branch L_qJ")
    g.label("L_qJ")
    stamp(g, 1)
    g.e("s_waitcnt vmcnt(0)")
    g.e("s_barrier")
    for c in range(LOOK): g.e(k_read(c, 1)[0])
    publish(g, "seg")
    g.nop(8)
    g.e(f"s_cmp_eq_u32 {sSPAN}, 64")
    g.e("s_cbranch_scc1 L_nomask")
    g.e(f"v_subrev_u32 v{VT}, {sLO}, v{VHI4}")
    g.e(f"v_mov_b32 v{VT+1}, 0xff800000")
    for kb in (0, 1):
        for r0 in range(0, 16, 4):
            for r in range(r0, r0 + 4):
                kc = 32 * kb + 8 * (r // 4) + r % 4
                g.e(f"v_add_u32 v{VT+2+r%4}, {kc}, v{VT}")
                g.e(f"v_cmp_gt_u32 s[{88+2*(r%4)}:{89+2*(r%4)}], {sSPAN}, v{VT+2+r%4}")
            g.e("s_nop 1")
            for r in range(r0, r0 + 4):
                for blk in (0, 1):
                    x = S_(0, blk, kb) + r
                    g.e(f"v_cndmask_b32 v{x}, v{VT+1}, v{x}, s[{88+2*(r%4)}:{89+2*(r%4)}]")
    g.label("L_nomask")
    mx = [NEGM(0), NEGM(1)]
    for blk in (0, 1): rowmax(g, 0, blk, mx[blk])
    crosshalf(g, "v_max_f32", mx, [VT + 2, VT + 3])
    for blk in (0, 1):
        g.e(f"v_sub_f32 v{NEGM(blk)}, 0, v{NEGM(blk)}")
    for r in range(1, 16):
        for blk in (0, 1): g.e(f"v_mov_b32 v{NEGM(blk)+r}, v{NEGM(blk)}")
    g.e(f"s_sub_u32 {sCNT}, {sCNT}, 1")
    stamp(g, 2)
    def subs(kb):
        return [f"v_add_f32 v{S_(0, blk, kb)+r}, v{S_(0, blk, kb)+r}, v{NEGM(blk)}" for blk in (0, 1) for r in range(16)]
    first_stream = subs(0) + softmax_stream(0, 0) + subs(1) + softmax_stream(0, 1)
    g.e(f"s_cmp_eq_u32 {sMODE}, 0")
    g.e("s_cbranch_scc0 L_p1B")
    phase1(g, 0, 0, first_stream, LdsTrack(list(range(LOOK))), check=False)
    g.e("s_branch L_back_A0")
    g.label("L_p1B")
    phase1(g, 1, 0, first_stream, LdsTrack(list(range(LOOK))), check=False)
    g.e("s_branch L_back_B0")
    for mode, nm in ((0, "A"), (1, "B")):
        L.append(".p2align 6")
        g.label(f"L_loop{nm}")
        loop_body(g, mode, 0, f"{nm}0")
        g.e("s_cbranch_scc1 L_tail1")
        loop_body(g, mode, 1, f"{nm}1")
        g.e(f"s_cbranch_scc0 L_loop{nm}")
        g.e("s_branch L_tail0")
    g.label("L_tail1")
    stamp(g, 3)
    tail(g, 1, "T1")
    g.label("L_tail0")
    stamp(g, 3)
    tail(g, 0, "T0")
    g.label("L_epiaddr")
    g.e(f"v_lshrrev_b32 v{VT}, 4, v{VLANE16}")
    g.e(f"s_lshl_b32 {sT3}, {sWAVE}, 13")
    g.e(f"s_add_u32 {sT3}, {sT3}, {EPI}")
    g.e(f"v_and_b32 v{VT+1}, 31, v{VT}")
    g.e(f"v_lshlrev_b32 v{VEW}, 7, v{VT+1}")
    g.e(f"v_lshl_add_u32 v{VEW}, v{VHI4}, 1, v{VEW}")
    g.e(f"v_and_b32 v{VT+1}, 7, v{VT}")
    g.e(f"v_lshl_add_u32 v{VEW}, v{VT+1}, 4, v{VEW}")
    g.e(f"v_add_u32 v{VEW}, {sT3}, v{VEW}")
    g.e(f"v_lshrrev_b32 v{VT+2}, 3, v{VT}")
    g.e(f"v_xor_b32 v{VT+3}, v{VT+1}, v{VT+2}")
    g.e(f"v_lshlrev_b32 v{VER}, 7, v{VT+2}")
    g.e(f"v_lshl_add_u32 v{VER}, v{VT+3}, 4, v{VER}")
    g.e(f"v_add_u32 v{VER}, {sT3}, v{VER}")
    g.e(f"v_mov_b32 v{VER+1}, v{VER}")
    g.e(f"v_lshlrev_b32 v{VES}, 12, v{VT+2}")
    g.e(f"v_lshl_add_u32 v{VES}, v{VT+1}, 4, v{VES}")
    g.e(f"s_setpc_b64 {sRET}")
    g.label("L_epi_done")
    stamp(g, 4)
    g.e(f"s_bitcmp1_b32 {sOFLAGS}, 0")
    g.e("s_cbranch_scc1 L_seg")
    g.e("s_waitcnt vmcnt(0)")
    publish(g, "end")
    g.label("L_end")
    g.e("s_endpgm")
    for tag, cb in (("A0", 0), ("A1", 1), ("B0", 0), ("B1", 1), ("T0", 0), ("T1", 1)):
        g.label(f"L_stub_{tag}")
        g.e(f"s_call_b64 {sRET}, L_slow_{cb}")
        g.e(f"s_branch L_back_{tag}")
    for pid in POLLS:
        g.label(f"L_pollstub_{pid}")
        g.e(f"buffer_load_dword v{VFLAG}, v{VFADDR}, {SD}, 0 offen sc1")
        g.e(f"s_branch L_pollback_{pid}")
    slow_path(g, 0)
    slow_path(g, 1)
    g.label("L_codeend")
    L.append('.section .rodata,"a"')
    L.append(".p2align 6")
    L.append(f""".amdhsa_kernel {NAME}_kernel
  .amdhsa_next_free_vgpr 512
  .amdhsa_next_free_sgpr 102
  .amdhsa_accum_offset 256
  .amdhsa_group_segment_fixed_size 0
  .amdhsa_kernarg_size 56
  .amdhsa_user_sgpr_count 2
  .amdhsa_user_sgpr_kernarg_segment_ptr 1
  .amdhsa_system_sgpr_workgroup_id_x 1
.end_amdhsa_kernel""")
    L.append(".p2align 8")
    L.append("L_table:")
    for i in range(0, len(table), 8):
        L.append(".long " + ",".join(str(x) for x in table[i:i+8]))
    L.append(".long 0,0,0,0,0,0,0,0,0,0,0,0,0,0,0,0")
    return "\n".join(L) + "\n"

if __name__ == "__main__":
    out = sys.argv[1] if len(sys.argv) > 1 else f"cdna_kernels/{NAME}.s"
    s = gen()
    open(out, "w").write(s)
    print("wrote", out, len(s), "bytes")
```

```python
import os
CU = [0, 828, 1660, 3299, 3744]
H = 16
ROWB = 4096
LEN = [CU[i+1] - CU[i] for i in range(4)]
NT = [(l + 63) // 64 for l in LEN]

def group_desc(seq, head, qt, a, b, mode, roles=(0, 0), share=None):
    s0, s1 = CU[seq], CU[seq+1]
    nt = NT[seq]; rem = LEN[seq] - 64 * (nt - 1)
    n = b - a
    assert n >= 2
    if b == nt:
        first, lo, hi = nt - 1, 0, rem
    else:
        first, lo, hi = b - 1, 0, 64
    if share is not None:
        lo, hi = share
    hoff = head * 256
    return [ (s0 + qt * 64) * ROWB + hoff, s1 * ROWB, (s0 + first * 64) * ROWB + hoff, (s0 + a * 64) * ROWB + hoff,
             n | (mode << 8) | (lo << 16) | (hi << 24), roles[0], roles[1], 0 ]

def pack(wgs):
    table = []
    for segs in wgs:
        assert len(segs) <= 4
        ent = []
        for i, (g0, g1) in enumerate(segs):
            g0 = list(g0); g1 = list(g1)
            assert (g0[4] & 0xffff) == (g1[4] & 0xffff)
            fl = 1 if i + 1 < len(segs) else 0
            g0[7] = fl; g1[7] = fl
            ent += g0 + g1
        ent += [0] * (64 - len(ent))
        table += ent
    return table, len(wgs)

def simple():
    jobs = []
    for seq in (2, 0, 1, 3):
        for qg in range((NT[seq] + 3) // 4):
            for head in range(H):
                jobs.append((seq, head, qg))
    wgs = []
    for seq, head, qg in jobs:
        g0 = group_desc(seq, head, qg * 4, 0, NT[seq], 0)
        g1 = group_desc(seq, head, qg * 4 + 2, 0, NT[seq], 0)
        wgs.append([(g0, g1)])
    return pack(wgs)

def build_table():
    return simple()

class Planner:
    def __init__(self):
        self.nslot = 0
    def slots(self, k):
        s = self.nslot; self.nslot += k
        return list(range(s, s + k))

def role(kind, slot=0):
    return kind | (slot << 4)

def segA(seq, head, qg, a, b, kinds=None):
    kinds = kinds or [0, 0, 0, 0]
    return (group_desc(seq, head, qg * 4, a, b, 0, kinds[0:2]), group_desc(seq, head, qg * 4 + 2, a, b, 0, kinds[2:4]))

def segB_split(P, seq, head, qt):
    nt = NT[seq]; rem = LEN[seq] - 64 * (nt - 1)
    sl = P.slots(2)
    rc = [role(2, sl[0]), role(2, sl[1])]; rp = [role(1, sl[0]), role(1, sl[1])]
    if nt % 2 == 0:
        h = nt // 2
        return (group_desc(seq, head, qt, h, nt, 1, rc), group_desc(seq, head, qt, 0, h, 1, rp))
    else:
        h = (nt - 1) // 2
        g0 = group_desc(seq, head, qt, h, nt, 1, rc, share=(0, 32))
        g1 = group_desc(seq, head, qt, h, nt, 1, rp, share=(32, rem))
        g1[3] = (CU[seq]) * ROWB + head * 256
        return (g0, g1)

def cutA(P, seq, head, qg, k):
    sl = P.slots(4)
    prod = segA(seq, head, qg, 0, k, [role(1, s) for s in sl])
    cons = segA(seq, head, qg, k, NT[seq], [role(2, s) for s in sl])
    return prod, cons

def plan_v1():
    P = Planner()
    perx = []
    for x in range(8):
        heads = [x, x + 8]
        A26 = [(2, h, qg) for h in heads for qg in range(6)]
        A13 = [(s, h, qg) for h in heads for s in (0, 1) for qg in range(3)]
        B13 = [segB_split(P, 2, h, 24) for h in heads]
        B7 = [segB_split(P, s, h, 12) for h in heads for s in (0, 1)]
        A7 = [segA(3, h, qg, 0, 7) for h in heads for qg in range(2)]
        bins = []
        prods = []; conss = []
        for j in A26:
            p, c = cutA(P, *j, 7)
            prods.append(p); conss.append(c)
        sevens = B7 + A7
        first = []
        for i in range(8): first.append([prods[i], sevens[i]])
        cut9 = [cutA(P, *A13[i], 4) for i in range(4)]
        later = []
        for i in range(4): later.append([prods[8 + i], cut9[i][1]])
        full13 = [segA(*A13[i], 0, 13) for i in range(4, 12)] + B13
        for i in range(4): first.append([cut9[i][0], full13[i]])
        rest = [[f] for f in full13[4:]]
        bins = first + rest[:4] + later + rest[4:] + [[c] for c in conss]
        assert len(bins) == 34, len(bins)
        perx.append(bins)
    nb = len(perx[0])
    wgs = [perx[i % 8][i // 8] for i in range(8 * nb)]
    return pack(wgs)

def build_table():
    return {"simple": simple, "v1": plan_v1}[os.environ.get("PLAN", "v1")]()

import random, math
def anneal(jobs, x, xm, iters=300000, seed=0, maxseg=2, base=20, NB=32):
    rnd = random.Random(seed)
    nj = len(jobs)
    cut = [0]*nj
    b1 = [b % NB for b in range(nj)]
    b2 = [rnd.randrange(NB) for _ in range(nj)]
    def costs():
        c = [0.0]*NB; ns=[0]*NB; nc=[0]*NB
        for j,(t,n,f,m) in enumerate(jobs):
            if cut[j]:
                c[b1[j]] += (n-cut[j])*f + xm; ns[b1[j]]+=1; nc[b1[j]]+=1
                c[b2[j]] += cut[j]*f; ns[b2[j]]+=1
            else:
                c[b1[j]] += n*f + m; ns[b1[j]]+=1
                if m: nc[b1[j]]+=1
        for b in range(NB): c[b] += x*max(0,ns[b]-1)
        pen = sum(max(0,s-maxseg) for s in ns)*50 + sum(max(0,s-1) for s in nc)*50
        tp = [0.0]*NB
        for j in range(nj):
            if cut[j]:
                tp[b2[j]] += cut[j] + x
                if tp[b2[j]] - x + 1.5 > c[b1[j]]: pen += 5
        for j in (14, 15):
            tp[b1[j]] += jobs[j][1]*jobs[j][2] + x
            if tp[b1[j]] - x + 1.5 > c[b1[j-2]]: pen += 5
        return c, pen
    def obj():
        c,pen = costs()
        return sum(math.exp((v-base)/0.5) for v in c)*(1+pen)
    cur = obj(); best = (cur, cut[:], b1[:], b2[:])
    for it in range(iters):
        T = 1.0*(1-it/iters)**2+1e-3
        j = rnd.randrange(nj); old = (cut[j], b1[j], b2[j]); k=None
        r = rnd.random()
        if r < 0.2: b1[j] = rnd.randrange(NB)
        elif r < 0.4: b2[j] = rnd.randrange(NB)
        elif r < 0.75:
            if jobs[j][0]=='A':
                cut[j] = max(0, min(jobs[j][1]-2, cut[j] + rnd.choice([-1,1,-1,1,-2,2,-4,4])))
                if cut[j]==1: cut[j]=rnd.choice([0,2])
        else:
            k = rnd.randrange(nj); oldk=(cut[k],b1[k],b2[k])
            rr = rnd.random()
            if rr<0.5: b1[j], b1[k] = b1[k], b1[j]
            elif rr<0.75: b2[j], b2[k] = b2[k], b2[j]
            else: b1[j], b2[k] = b2[k], b1[j]
        bad = (cut[j] and b1[j]==b2[j]) or (k is not None and cut[k] and b1[k]==b2[k])
        new = obj() if not bad else 1e300
        if new < cur or rnd.random() < math.exp(-(math.log(new)-math.log(cur))/T): cur = new
        else:
            cut[j], b1[j], b2[j] = old
            if k is not None: cut[k],b1[k],b2[k]=oldk
        if cur < best[0]: best = (cur, cut[:], b1[:], b2[:])
    cur, cut, b1, b2 = best
    c,pen = costs()
    return max(c), pen, cut, b1, b2

def best_anneal(x, xm, bp, seeds=6):
    import json
    cache = os.path.join(os.path.dirname(os.path.abspath(__file__)), f"plan_{x}_{xm}_{bp}.json")
    if os.path.exists(cache): return json.load(open(cache))
    jobs = [('A',26,1.0,0)]*12 + [('B',13,bp,xm)]*2+ [('B',13,bp,0)]*2 + [('A',13,1.0,0)]*12 + [('A',7,1.0,0)]*4
    res = [anneal(jobs, x, xm, seed=s) for s in range(seeds)]
    res = [r for r in res if r[1] == 0]
    r = min(res, key=lambda r: r[0])
    json.dump(r, open(cache, "w"))
    return r

def plan_sa():
    x = float(os.environ.get("SX", "4.5")); xm = float(os.environ.get("SXM", "0.8")); bp = float(os.environ.get("SBP", "1.2"))
    m, pen, cut, b1, b2 = best_anneal(x, xm, bp)
    P = Planner()
    perx = []
    for xc in range(8):
        heads = [xc, xc + 8]
        A26 = [(2, h, qg) for h in heads for qg in range(6)]
        A13 = [(s, h, qg) for h in heads for s in (0, 1) for qg in range(3)]
        A7 = [(3, h, qg) for h in heads for qg in range(2)]
        Bc = []; Bp = []
        for h in heads:
            sl = P.slots(2)
            Bp.append((group_desc(2, h, 24, 0, 13, 1, [role(1, s) for s in sl]), group_desc(0, h, 12, 0, 13, 1)))
            Bc.append((group_desc(2, h, 24, 13, 26, 1, [role(2, s) for s in sl]), group_desc(1, h, 12, 0, 13, 1)))
        alljobs = A26 + [None]*4 + A13 + A7
        prod = [[] for _ in range(32)]; fin = [[] for _ in range(32)]; cons = [[] for _ in range(32)]
        dep = [set() for _ in range(32)]
        for j, jb in enumerate(alljobs):
            if 12 <= j < 14: cons[b1[j]].append(Bc[j-12]); dep[b1[j]].add(b1[j+2]); continue
            if 14 <= j < 16: fin[b1[j]].insert(0, Bp[j-14]); continue
            if cut[j]:
                p, c = cutA(P, *jb, cut[j])
                prod[b2[j]].append(p); cons[b1[j]].append(c); dep[b1[j]].add(b2[j])
            else:
                fin[b1[j]].append(segA(*jb, 0, NT[jb[0]]))
        lvl = [0]*32
        for _ in range(32):
            for b in range(32):
                for d in dep[b]: lvl[b] = max(lvl[b], lvl[d] + 1)
        order = sorted(range(32), key=lambda b: lvl[b])
        bins = [prod[b] + fin[b] + cons[b] for b in order]
        assert all(len(b) >= 1 for b in bins)
        perx.append(bins)
    wgs = [perx[i % 8][i // 8] for i in range(256)]
    return pack(wgs)

def build_table():
    return {"simple": simple, "v1": plan_v1, "sa": plan_sa}[os.environ.get("PLAN", "sa")]()
```

```python
import sys, os, math
from sched import build_table

NAME = "standalone__varlen_attn_packed__ragged"
ROWB = 4096
TILEB = 64 * ROWB
HUGE = 0x40000000
SLOTB = 17408
CSCALE = (128 ** -0.5) * math.log2(math.e)
THR = float(2 ** 24)

import struct
def f2u(x):
    return struct.unpack("<I", struct.pack("<f", x))[0]

DIAG = int(os.environ.get("DIAG", "0"))

def O_(blk, db):  return (blk * 4 + db) * 16
def Q_(blk, ks):  return 128 + (blk * 8 + ks) * 4
def RING(i):      return 192 + (i % 16) * 4
def S_(buf, blk, kb): return ((buf * 2 + blk) * 2 + kb) * 16
def NEGM(blk):    return 128 + blk * 16
VKA = 160
VVA = 168
VDK = 172
VDV = 176
VQO = 180
VLANE16 = 181
VL = 182
VTS = 184
VHI4 = 186
VT = 188
def a4(b): return f"a[{b}:{b+3}]"
def a2(b): return f"a[{b}:{b+1}]"
def a16(b): return f"a[{b}:{b+15}]"
def v4(b): return f"v[{b}:{b+3}]"
def v2(b): return f"v[{b}:{b+1}]"
def v16(b): return f"v[{b}:{b+15}]"

SQ, SK, SV, SO, SW, SD = "s[4:7]", "s[8:11]", "s[12:15]", "s[16:19]", "s[20:23]", "s[24:27]"
sWAVE = "s28"; sDOFF = "s29"
sQOFF, sNREC, sFIRST, sNEXT, sINFO, sROLE0, sROLE1, sFLAGS = [f"s{32+i}" for i in range(8)]
sKN = "s40"; sVN = "s41"; sCNT = "s42"; sLDSD = "s43"; sTHR = "s44"; sCHK = "s45"
sC0 = "s46"; sC1 = "s47"
sT0 = "s48"; sT1 = "s49"; sROWOFF = "s50"; sG = "s51"; sLO = "s52"; sSPAN = "s53"; sMODE = "s54"; sROLE = "s55"
sT2 = "s56"; sT3 = "s57"
sPEND = "s80"; sPOLLAT = "s81"; VFLAG = 187; VFADDR = 253
sOQ = "s58"; sOROLE = "s59"; sOFLAGS = "s30"; sSTAMP = "s31"
EPI = 131072
sRET = "s[60:61]"; sTBL = "s[62:63]"

KBUF = [0, 16384]; VBUF = [32768, 49152]

class G:
    def __init__(self):
        self.lines = []
    def e(self, s):
        self.lines.append("    " + s)
    def c(self, s):
        self.lines.append("    ; " + s)
    def label(self, l):
        self.lines.append(l + ":")
    def nop(self, n):
        while n > 0:
            k = min(n, 16)
            self.e(f"s_nop {k-1}")
            n -= k

def cost(ins):
    op = ins.split()[0]
    if op in ("v_exp_f32", "v_rcp_f32"): return 8
    if op.startswith("buffer_load") and ins.rstrip().endswith("lds"): return DMACOST
    return 4
DMACOST = 16

def softmax_stream(buf, kb):
    out = []
    for blk in (0, 1):
        b = S_(buf, blk, kb)
        for h in (0, 1):
            r = b + 8 * h
            for i in range(8):
                out.append(f"v_exp_f32 v{r+i}, v{r+i}")
                if i >= 1:
                    j = i - 1
                    out += add_ins(blk, kb, h, r, j)
                    if j % 2 == 1:
                        k = j // 2
                        out.append(f"v_cvt_pk_bf16_f32 v{r+k}, v{r+2*k}, v{r+2*k+1}")
            out += ["TRAIL"] + add_ins(blk, kb, h, r, 7) + [f"v_cvt_pk_bf16_f32 v{r+3}, v{r+6}, v{r+7}"]
    res = []
    i = 0
    while i < len(out):
        if out[i] == "TRAIL":
            tr = out[i+1:i+3]
            if i + 3 < len(out):
                res.append(out[i+3]); res += tr; i += 4
            else:
                res.append("s_nop 0"); res += tr; i += 3
        else:
            res.append(out[i]); i += 1
    return res

def add_ins(blk, kb, h, r, j):
    ts = VTS + blk
    if kb == 0 and h == 0:
        if j == 0: return []
        if j == 1: return [f"v_add_f32 v{ts}, v{r}, v{r+1}"]
    return [f"v_add_f32 v{ts}, v{ts}, v{r+j}"]

def k_read(c, kbuf):
    kb, ks = c // 8, c % 8
    return [f"ds_read_b128 {a4(RING(c))}, v{VKA+ks} offset:{KBUF[kbuf] + kb*8192}"]
def v_read(c, vbuf):
    g = c - 16
    kk, db = g // 4, g % 4
    return [f"ds_read_b64_tr_b16 {a2(RING(c)+2*u)}, v{VVA+db} offset:{VBUF[vbuf] + kk*4096 + u*2048}" for u in (0, 1)]

def qk_mfmas(nb, czero=False):
    m = []
    for kb in (0, 1):
        for ks in range(8):
            c = kb * 8 + ks
            for blk in (0, 1):
                d = S_(nb, blk, kb)
                if ks == 0:
                    ci = "0" if czero else v16(NEGM(blk))
                else:
                    ci = v16(d)
                m.append((c, f"v_mfma_f32_32x32x16_bf16 {v16(d)}, {a4(RING(c))}, {a4(Q_(blk, ks))}, {ci}"))
    return m
def pv_mfmas(cb):
    m = []
    for kk in range(4):
        for db in range(4):
            c = 16 + kk * 4 + db
            for blk in (0, 1):
                p = S_(cb, blk, kk // 2) + 8 * (kk % 2)
                m.append((c, f"v_mfma_f32_32x32x16_bf16 {a16(O_(blk, db))}, {a4(RING(c))}, {v4(p)}, {a16(O_(blk, db))}"))
    return m

class LdsTrack:
    def __init__(self, outstanding=None):
        self.q = list(outstanding or [])
    def issue(self, item):
        self.q.append(item)
    def need(self, items):
        last = -1
        for i, it in enumerate(self.q):
            if it in items: last = i
        if last < 0: return None
        n = len(self.q) - 1 - last
        self.q = self.q[last+1:]
        return n
    def clear(self):
        self.q = []

def distribute(stream, gaps, g0, g1, budget=24):
    free = [max(0, budget - sum(cost(x if isinstance(x, str) else (x[1] if len(x) > 1 else "s_a b")) for x in gaps[g])) for g in range(g0, g1 + 1)]
    tot_free = sum(free); tot = sum(cost(x) for x in stream)
    ratio = tot / tot_free if tot_free else 1.0
    cumf = 0; cums = 0; i = 0
    for g in range(g0, g1 + 1):
        cumf += free[g - g0] * ratio
        while i < len(stream) and (cums + cost(stream[i]) / 2 <= cumf + 1e-9 or g == g1):
            gaps[g].append(stream[i]); cums += cost(stream[i]); i += 1
    assert i == len(stream)

def emit_gapped(g, mfmas, gaps, trk, waitpairs=True):
    seen = set()
    for i, (c, m) in enumerate(mfmas):
        if c not in seen:
            items = {c}
            if waitpairs and c % 2 == 0: items.add(c + 1)
            if not (waitpairs and c % 2 == 1 and (c - 1) in seen):
                n = trk.need(items)
                if n is not None:
                    g.e(f"s_waitcnt lgkmcnt({n})")
            else:
                n = trk.need({c})
                if n is not None:
                    g.e(f"s_waitcnt lgkmcnt({n})")
            seen.add(c)
        g.e(m)
        for f in gaps[i]:
            if isinstance(f, tuple):
                if f[0] == 'rd':
                    trk.issue(f[2]); g.e(f[1])
                elif f[0] == 'bar':
                    g.e("s_waitcnt vmcnt(0) lgkmcnt(0)"); g.e("s_barrier"); trk.clear()
            else:
                g.e(f)

LOOK = 6
BARGAP = 22

def dma_list(mode, which, buf, soff):
    srd = SK if which == 'K' else SV
    vo = VDK if which == 'K' else VDV
    base = (KBUF if which == 'K' else VBUF)[buf]
    out = [f"s_add_u32 m0, {sLDSD}, {base}"]
    for i in range(4):
        out.append(f"buffer_load_dwordx4 v{vo+i}, {srd}, {soff} offen offset:{1024*i} lds")
    if mode == 1:
        out.append(f"s_add_u32 {sT1}, {soff}, {16*ROWB}")
        out.append(f"s_add_u32 m0, {sLDSD}, {base+4096}")
        for i in range(4):
            out.append(f"buffer_load_dwordx4 v{vo+i}, {srd}, {sT1} offen offset:{1024*i} lds")
    return out

def place_dmas(gaps, dl, g0, step):
    g = g0
    pend = []
    for ins in dl:
        if ins.startswith("s_"):
            pend.append(ins)
        else:
            for p in pend: gaps[max(g - 1, 0)].append(p)
            pend = []
            gaps[g].append(ins); g += step
    return g

POLLS = []
def phase1(g, mode, cb, stream, trk, check=True):
    nb = 1 - cb
    m1 = qk_mfmas(nb)
    gaps = [[] for _ in range(32)]
    for c in range(LOOK, 16):
        gaps[2 * (c - LOOK)].append(('rd', k_read(c, nb)[0], c))
    for c in range(16, 16 + LOOK):
        r = v_read(c, cb)
        gaps[2 * (c - LOOK)].append(('rd', r[0], c)); gaps[2 * (c - LOOK) + 1].append(('rd', r[1], c))
    pre = [f"s_cmp_ge_u32 {sCNT}, 2", f"s_cselect_b32 {sT0}, {sKN}, {HUGE}"]
    dl = pre + dma_list(mode, 'K', cb, sT0) + dma_list(mode, 'V', nb, sVN)
    gend = place_dmas(gaps, dl, 1, 2 if mode == 0 else 1)
    gaps[min(gend, 29)] += [f"s_mov_b32 {sVN}, {sKN}", f"s_add_u32 {sKN}, {sKN}, {TILEB}"]
    pid = len(POLLS); POLLS.append(pid)
    gaps[min(gend + 1, 29)] += [f"s_cmp_eq_u32 {sCNT}, {sPOLLAT}", f"s_cbranch_scc1 L_pollstub_{pid}", f"L_pollback_{pid}:"]
    if check:
        distribute(stream, gaps, 0, 29)
        gaps[30] += [f"v_max_f32 v{VT}, v{VTS}, v{VTS+1}"]
        gaps[31] += [f"v_cmp_nge_f32 vcc, {sTHR}, v{VT}"]
    else:
        distribute(stream, gaps, 0, 30)
        gaps[31] += ["s_nop 0"]
    emit_gapped(g, m1, gaps, trk)

def loop_body(g, mode, cb, tag):
    nb = 1 - cb
    trk = LdsTrack(list(range(LOOK)))
    phase1(g, mode, cb, softmax_stream(cb, 1), trk)
    g.e(f"s_cbranch_vccnz L_stub_{tag}")
    g.label(f"L_back_{tag}")
    m2 = pv_mfmas(cb)
    gaps = [[] for _ in range(32)]
    for c in range(16 + LOOK, 32):
        r = v_read(c, cb)
        gi = 2 * (c - 16 - LOOK)
        gaps[gi].append(('rd', r[0], c)); gaps[gi + 1].append(('rd', r[1], c))
    gaps[BARGAP].append(('bar',))
    for c in range(LOOK):
        gaps[min(31, BARGAP + 1 + (c * (31 - BARGAP)) // LOOK)].append(('rd', k_read(c, cb)[0], c))
    gaps[31] += [f"s_add_u32 {sCHK}, {sCHK}, {TILEB}", f"s_sub_u32 {sCNT}, {sCNT}, 1", f"s_cmp_eq_u32 {sCNT}, 0"]
    st = [f"v_add_f32 v{VL}, v{VL}, v{VTS}", f"v_add_f32 v{VL+1}, v{VL+1}, v{VTS+1}"] + softmax_stream(nb, 0)
    distribute(st, gaps, 0, 30)
    emit_gapped(g, m2, gaps, trk)
    assert trk.q == list(range(LOOK)), trk.q

R1 = [VT + 4, VT + 6]; R2 = [VT + 8, VT + 10]
VEW = 248; VER = 249; VES = 251

def pv_mfmas_db(cb):
    m = []
    for db in range(4):
        for kk in range(4):
            c = 16 + db * 4 + kk
            for blk in (0, 1):
                p = S_(cb, blk, kk // 2) + 8 * (kk % 2)
                m.append((c, f"v_mfma_f32_32x32x16_bf16 {a16(O_(blk, db))}, {a4(RING(c))}, {v4(p)}, {a16(O_(blk, db))}"))
    return m
def v_read_db(c, vbuf):
    g_ = c - 16
    db, kk = g_ // 4, g_ % 4
    return [f"ds_read_b64_tr_b16 {a2(RING(c)+2*u)}, v{VVA+db} offset:{VBUF[vbuf] + kk*4096 + u*2048}" for u in (0, 1)]

def tail_pv(g, cb, kind, trk):
    nb = 1 - cb
    mf = pv_mfmas_db(cb)
    st = []
    n = 0
    for db in range(4):
        md = 8 * (db + 1)
        for blk in (0, 1):
            for k in (0, 2):
                t = 208 + (n % 2) * 8
                d = 224 + (n % 4) * 4
                ad = 200 + (n % 2) * 2
                u = 240 + (n % 2) * 2
                gi = (db * 2 + blk) * 2 + k // 2
                n += 1
                o = O_(blk, db) + 4 * k
                for r in range(8): st.append((md, f"v_accvgpr_read_b32 v{t+r}, a{o+r}"))
                if kind == 1:
                    for r in range(4): st.append((md, f"v_cvt_pk_bf16_f32 v{d+r}, v{t+2*r}, v{t+2*r+1}"))
                    st.append((md, f"s_add_u32 {sT3}, {sT2}, {(gi//4)*4096}"))
                    st.append((md, f"buffer_store_dwordx4 {v4(d)}, v{VLANE16}, {SW}, {sT3} offen offset:{(gi%4)*1024} sc1"))
                    continue
                ch = 4 * (db % 2) + k
                st.append((md, f"v_xor_b32 v{ad}, {ch<<4}, v{VEW}"))
                st.append((md, f"v_xor_b32 v{ad+1}, {(ch+1)<<4}, v{VEW}"))
                for r in range(8): st.append((md, f"v_mul_f32 v{t+r}, v{t+r}, v{R1[blk]}"))
                if kind == 2:
                    st.append((md, ('vm', gi)))
                    b = S_(nb, 0, 0) + 4 * gi
                    for r in range(4):
                        st.append((md, f"v_lshlrev_b32 v{u}, 16, v{b+r}"))
                        st.append((md, f"v_and_b32 v{u+1}, 0xffff0000, v{b+r}"))
                        st.append((md, f"v_fmac_f32 v{t+2*r}, v{u}, v{R2[blk]}"))
                        st.append((md, f"v_fmac_f32 v{t+2*r+1}, v{u+1}, v{R2[blk]}"))
                for r in range(4): st.append((md, f"v_cvt_pk_bf16_f32 v{d+r}, v{t+2*r}, v{t+2*r+1}"))
                st.append((md, ('lds', f"w{n}a", f"ds_write_b64 v{ad}, {v2(d)} offset:{blk*4096}")))
                st.append((md, ('lds', f"w{n}b", f"ds_write_b64 v{ad+1}, {v2(d+2)} offset:{blk*4096}")))
        if kind == 1: continue
        if db % 2 == 1:
            h = db // 2
            rb = S_(nb, 0, 0) + h * 32
            for i in range(8):
                st.append((md, ('lds', f"r{h}{i}", f"ds_read_b128 {v4(rb+4*i)}, v{VER + (i%2)} offset:{1024*i}")))
            for i in range(8):
                st.append((md, f"s_add_u32 {sT3}, {sOQ}, {i*8*ROWB + h*128}"))
                st.append((md, ('need', f"r{h}{i}")))
                st.append((md, f"buffer_store_dwordx4 {v4(rb+4*i)}, v{VES}, {SO}, {sT3} offen"))
    vreads = {}
    for c in range(16 + LOOK, 32):
        gi = 2 * (c - 16 - LOOK)
        r = v_read_db(c, cb)
        vreads.setdefault(gi, []).append((c, r[0])); vreads.setdefault(gi + 1, []).append((c, r[1]))
    cnt = [0]
    last_of = {}
    def E(x):
        g.e(x); cnt[0] += 1
    fi = 0
    seen = set()
    def emit_filler():
        nonlocal fi
        md, ins = st[fi]
        dist = cnt[0] - last_of[md]
        if dist < 13:
            E(f"s_nop {min(15, 13 - dist - 1)}"); cnt[0] += 13 - dist - 1
        if isinstance(ins, tuple):
            if ins[0] == 'lds': trk.issue(ins[1]); E(ins[2])
            elif ins[0] == 'need':
                nn = trk.need({ins[1]})
                if nn is not None: E(f"s_waitcnt lgkmcnt({min(nn,15)})")
            elif ins[0] == 'vm':
                E(f"s_waitcnt vmcnt({15 - ins[1] + nstores[0]})")
        else:
            if ins.startswith("buffer_store"): nstores[0] += 1
            E(ins)
        fi += 1
    nstores = [0]
    for i, (c, m) in enumerate(mf):
        if c not in seen:
            nn = trk.need({c})
            if nn is not None: E(f"s_waitcnt lgkmcnt({min(nn,15)})")
            seen.add(c)
        E(m)
        last_of[i + 1] = cnt[0]
        for (cc, r) in vreads.get(i, []):
            trk.issue(cc); E(r)
        k = 0
        while fi < len(st) and st[fi][0] <= i - 1 and k < 5:
            emit_filler(); k += 1
    while fi < len(st): emit_filler()

def tail(g, cb, tag):
    nb = 1 - cb
    g.e("s_waitcnt lgkmcnt(0)")
    pre_reads = [(c, r) for c in range(16, 16 + LOOK) for r in v_read_db(c, cb)]
    for c, r in pre_reads: g.e(r)
    for ins in softmax_stream(cb, 1): g.e(ins)
    g.e(f"v_max_f32 v{VT}, v{VTS}, v{VTS+1}")
    g.e("s_nop 0")
    g.e(f"v_cmp_nge_f32 vcc, {sTHR}, v{VT}")
    g.e(f"s_cbranch_vccnz L_stub_{tag}")
    g.label(f"L_back_{tag}")
    g.e(f"v_add_f32 v{VL}, v{VL}, v{VTS}"); g.e(f"v_add_f32 v{VL+1}, v{VL+1}, v{VTS+1}")
    g.e(f"s_mov_b32 {sOQ}, {sQOFF}")
    g.e(f"s_mov_b32 {sOROLE}, {sROLE}")
    g.e(f"s_mov_b32 {sOFLAGS}, {sFLAGS}")
    g.e(f"s_bitcmp1_b32 {sFLAGS}, 0")
    g.e(f"s_cbranch_scc0 L_nopf_{tag}")
    g.e(f"s_mov_b64 s[32:33], s[64:65]"); g.e(f"s_mov_b64 s[34:35], s[66:67]")
    g.e(f"s_mov_b64 s[36:37], s[68:69]"); g.e(f"s_mov_b64 s[38:39], s[70:71]")
    g.e(f"s_call_b64 {sRET}, L_setup")
    g.label(f"L_nopf_{tag}")
    g.e(f"s_and_b32 {sT0}, {sOROLE}, 3")
    g.e(f"s_lshr_b32 {sT1}, {sOROLE}, 4")
    g.e(f"s_mul_i32 {sT2}, {sT1}, {SLOTB}")
    g.e(f"s_cmp_eq_u32 {sT0}, 1")
    g.e(f"s_cbranch_scc1 L_prod_{tag}")
    g.e(f"s_call_b64 {sRET}, L_epiaddr")
    g.e(f"s_cmp_eq_u32 {sT0}, 2")
    g.e(f"s_cbranch_scc1 L_cons_{tag}")
    mk = lambda: LdsTrack([c for c, r in pre_reads])
    crosshalf(g, "v_add_f32", [VL, VL + 1], [VT, VT + 1])
    for blk in (0, 1): g.e(f"v_rcp_f32 v{R1[blk]}, v{VL+blk}")
    g.e("s_nop 1")
    for blk in (0, 1): g.e(f"v_mov_b32 v{R1[blk]+1}, v{R1[blk]}")
    tail_pv(g, cb, 0, mk())
    g.e("s_branch L_epi_done")
    g.label(f"L_prod_{tag}")
    g.e(f"v_mov_b32 v{VT}, v{NEGM(0)}"); g.e(f"v_mov_b32 v{VT+1}, v{NEGM(1)}")
    g.e(f"v_mov_b32 v{VT+2}, v{VL}"); g.e(f"v_mov_b32 v{VT+3}, v{VL+1}")
    g.e(f"s_add_u32 {sT3}, {sT2}, 16384")
    g.e(f"buffer_store_dwordx4 {v4(VT)}, v{VLANE16}, {SW}, {sT3} offen sc1")
    tail_pv(g, cb, 1, mk())
    g.e(f"s_add_u32 {sPEND}, {sT1}, 1")
    g.e("s_branch L_epi_done")
    g.label(f"L_cons_{tag}")
    g.e(f"s_and_b32 {sT1}, {sT1}, 31")
    g.label(f"L_poll_{tag}")
    g.e(f"v_readfirstlane_b32 {sT3}, v{VFLAG}")
    g.e(f"s_lshr_b32 {sT3}, {sT3}, {sT1}")
    g.e(f"s_bitcmp1_b32 {sT3}, 0")
    g.e(f"s_cbranch_scc1 L_polled_{tag}")
    g.e("s_sleep 16")
    g.e(f"buffer_load_dword v{VFLAG}, v{VFADDR}, {SD}, 0 offen sc1")
    g.e("s_waitcnt vmcnt(0)")
    g.e(f"s_branch L_poll_{tag}")
    g.label(f"L_polled_{tag}")
    g.e(f"s_add_u32 {sT3}, {sT2}, 16384")
    g.e(f"buffer_load_dwordx4 {v4(232)}, v{VLANE16}, {SW}, {sT3} offen sc1")
    for gi in range(16):
        if gi % 4 == 0: g.e(f"s_add_u32 {sT3}, {sT2}, {(gi//4)*4096}")
        g.e(f"buffer_load_dwordx4 {v4(S_(nb, 0, 0) + 4*gi)}, v{VLANE16}, {SW}, {sT3} offen offset:{(gi%4)*1024} sc1")
    g.e("s_waitcnt vmcnt(16)")
    F1 = [236, 237]; F2 = [238, 239]
    for blk in (0, 1):
        g.e(f"v_min_f32 v{VT}, v{NEGM(blk)}, v{232+blk}")
        g.e(f"v_sub_f32 v{F1[blk]}, v{VT}, v{NEGM(blk)}")
        g.e(f"v_sub_f32 v{F2[blk]}, v{VT}, v{232+blk}")
        g.e(f"v_exp_f32 v{F1[blk]}, v{F1[blk]}")
        g.e(f"v_exp_f32 v{F2[blk]}, v{F2[blk]}")
        g.e("s_nop 0")
        g.e(f"v_mul_f32 v{VL+blk}, v{VL+blk}, v{F1[blk]}")
        g.e(f"v_fmac_f32 v{VL+blk}, v{234+blk}, v{F2[blk]}")
    crosshalf(g, "v_add_f32", [VL, VL + 1], [VT, VT + 1])
    for blk in (0, 1): g.e(f"v_rcp_f32 v{VL+blk}, v{VL+blk}")
    g.e("s_nop 1")
    for blk in (0, 1):
        g.e(f"v_mul_f32 v{R1[blk]}, v{F1[blk]}, v{VL+blk}")
        g.e(f"v_mul_f32 v{R1[blk]+1}, v{F1[blk]}, v{VL+blk}")
        g.e(f"v_mul_f32 v{R2[blk]}, v{F2[blk]}, v{VL+blk}")
        g.e(f"v_mul_f32 v{R2[blk]+1}, v{F2[blk]}, v{VL+blk}")
    tail_pv(g, cb, 2, mk())
    g.e("s_branch L_epi_done")

def publish(g, tag):
    g.e(f"s_cmp_eq_u32 {sPEND}, 0")
    g.e(f"s_cbranch_scc1 L_nopub_{tag}")
    g.e(f"s_sub_u32 {sPEND}, {sPEND}, 1")
    g.e(f"s_lshr_b32 {sT2}, {sPEND}, 5")
    g.e(f"s_lshl_b32 {sT2}, {sT2}, 2")
    g.e(f"s_and_b32 {sT3}, {sPEND}, 31")
    g.e(f"s_lshl_b32 {sT3}, 1, {sT3}")
    g.e(f"v_mov_b32 v{VT+4}, {sT2}")
    g.e(f"v_mov_b32 v{VT+5}, {sT3}")
    g.e(f"s_mov_b32 {sPEND}, 0")
    g.e("s_mov_b64 exec, 1")
    g.e(f"buffer_atomic_or v{VT+5}, v{VT+4}, {SD}, 0 offen")
    g.e("s_mov_b64 exec, -1")
    g.label(f"L_nopub_{tag}")

def rowmax(g, buf, blk, dst):
    regs = [S_(buf, blk, kb) + r for kb in (0, 1) for r in range(16)]
    g.e(f"v_max3_f32 v{dst}, v{regs[0]}, v{regs[1]}, v{regs[2]}")
    i = 3
    while i + 1 < len(regs):
        g.e(f"v_max3_f32 v{dst}, v{dst}, v{regs[i]}, v{regs[i+1]}"); i += 2
    if i < len(regs):
        g.e(f"v_max_f32 v{dst}, v{dst}, v{regs[i]}")

def crosshalf(g, op, regs, tmp):
    for r, t in zip(regs, tmp): g.e(f"v_mov_b32 v{t}, v{r}")
    g.e("s_nop 1")
    for r, t in zip(regs, tmp): g.e(f"v_permlane32_swap_b32 v{r}, v{t}")
    g.e("s_nop 1")
    for r, t in zip(regs, tmp): g.e(f"{op} v{r}, v{r}, v{t}")

def slow_path(g, cb):
    nb = 1 - cb
    g.label(f"L_slow_{cb}")
    g.nop(20)
    KT = 192
    for kb in (0, 1):
        g.e(f"s_add_u32 {sT2}, {sCHK}, {kb*32*ROWB}")
        for ks in range(8):
            g.e(f"buffer_load_dwordx4 {v4(KT+4*ks)}, v{VQO}, {SK}, {sT2} offen offset:{ks*32}")
        g.e("s_waitcnt vmcnt(0)")
        for ks in range(8):
            for blk in (0, 1):
                d = S_(cb, blk, kb)
                ci = v16(NEGM(blk)) if ks == 0 else v16(d)
                g.e(f"v_mfma_f32_32x32x16_bf16 {v16(d)}, {v4(KT+4*ks)}, {a4(Q_(blk, ks))}, {ci}")
        g.nop(4)
    g.nop(20)
    dl = [224, 225]; fa = [228, 229]
    for blk in (0, 1): rowmax(g, cb, blk, dl[blk])
    crosshalf(g, "v_max_f32", dl, [226, 227])
    for blk in (0, 1):
        g.e(f"v_max_f32 v{dl[blk]}, 0, v{dl[blk]}")
    for blk in (0, 1):
        g.e(f"v_exp_f32 v{fa[blk]}, -v{dl[blk]}")
    for blk in (0, 1):
        for r in range(16): g.e(f"v_sub_f32 v{NEGM(blk)+r}, v{NEGM(blk)+r}, v{dl[blk]}")
        for buf in (0, 1):
            for kb in (0, 1):
                for r in range(16):
                    x = S_(buf, blk, kb) + r
                    g.e(f"v_sub_f32 v{x}, v{x}, v{dl[blk]}")
        g.e(f"v_mul_f32 v{VL+blk}, v{VL+blk}, v{fa[blk]}")
        for db in range(4):
            for r0 in range(0, 16, 4):
                for r in range(4): g.e(f"v_accvgpr_read_b32 v{232+r}, a{O_(blk, db)+r0+r}")
                for r in range(4): g.e(f"v_mul_f32 v{232+r}, v{232+r}, v{fa[blk]}")
                for r in range(4): g.e(f"v_accvgpr_write_b32 a{O_(blk, db)+r0+r}, v{232+r}")
    for ins in softmax_stream(cb, 0) + softmax_stream(cb, 1): g.e(ins)
    g.nop(4)
    g.e(f"s_setpc_b64 {sRET}")

def stamp(g, idx):
    if not DIAG: return
    g.e("s_memtime s[96:97]")
    g.e("s_waitcnt lgkmcnt(0)")
    g.e("v_mov_b32 v254, s96")
    g.e(f"s_lshl_b32 s98, s2, 2")
    g.e(f"s_add_u32 s98, s98, {sWAVE}")
    g.e(f"s_lshl_b32 s98, s98, 7")
    g.e(f"s_add_u32 s98, s98, {sSTAMP}")
    g.e(f"s_add_u32 {sSTAMP}, {sSTAMP}, 4")
    g.e("v_mov_b32 v255, 0")
    g.e(f"buffer_store_dword v254, v255, {SW}, s98 offen")
    if DIAG == 3:
        g.e("s_memrealtime s[96:97]")
        g.e("s_waitcnt lgkmcnt(0)")
        g.e("v_mov_b32 v254, s96")
        g.e(f"buffer_store_dword v254, v255, {SW}, s98 offen offset:64")

def rstamp(g, idx):
    if not DIAG: return
    g.e("s_memrealtime s[96:97]")
    g.e("s_waitcnt lgkmcnt(0)")
    g.e("v_mov_b32 v254, s96")
    g.e(f"s_lshl_b32 s98, s2, 2")
    g.e(f"s_add_u32 s98, s98, {sWAVE}")
    g.e(f"s_lshl_b32 s98, s98, 7")
    g.e(f"s_add_u32 s98, s98, {0x8000000 + idx*4}")
    g.e("v_mov_b32 v255, 0")
    g.e(f"buffer_store_dword v254, v255, {SW}, s98 offen")

def gen():
    table, nwg = build_table()
    g = G()
    hdr = open(os.path.join(os.path.dirname(os.path.abspath(__file__)), "..", "cdna_kernels", NAME + ".s.ref")).read().split("\n")
    head = [l for l in hdr if l.startswith(";") and "@launch" not in l]
    L = g.lines
    L += head
    L.append(f"; @launch grid=({nwg},1,1) block=(256,1,1) lds=163840")
    L.append('.amdgcn_target "amdgcn-amd-amdhsa--gfx950"')
    L.append(".text")
    L.append(f".globl {NAME}_kernel")
    L.append(".p2align 8")
    L.append(f".type {NAME}_kernel,@function")
    g.label(f"{NAME}_kernel")
    g.e(f"s_cmp_ge_u32 s2, {nwg}")
    g.e("s_cbranch_scc1 L_end")
    g.e("s_load_dwordx8 s[64:71], s[0:1], 0")
    g.e("s_load_dwordx4 s[72:75], s[0:1], 32")
    g.e("s_load_dwordx2 s[76:77], s[0:1], 48")
    g.e("s_getpc_b64 s[78:79]")
    g.label("L_pc0")
    g.e("v_lshlrev_b32 v2, 7, v0")
    g.e("v_min_u32 v3, L_codeend-L_pc0-4, v2")
    g.e("global_load_dword v250, v3, s[78:79]")
    g.e("v_add_u32 v2, 0x8000, v2")
    g.e("v_min_u32 v2, L_codeend-L_pc0-4, v2")
    g.e("global_load_dword v251, v2, s[78:79]")
    g.e("v_lshrrev_b32 v1, 6, v0")
    g.e(f"s_getpc_b64 {sTBL}")
    g.e("s_add_u32 s62, s62, L_table@rel32@lo+4")
    g.e("s_addc_u32 s63, s63, L_table@rel32@hi+12")
    g.e(f"v_readfirstlane_b32 {sWAVE}, v1")
    g.e("v_and_b32 v0, 63, v0")
    g.e(f"s_lshl_b32 {sDOFF}, s2, 8")
    g.e(f"s_lshr_b32 {sT0}, {sWAVE}, 1")
    g.e(f"s_lshl_b32 {sT0}, {sT0}, 5")
    g.e(f"s_add_u32 {sDOFF}, {sDOFF}, {sT0}")
    g.e(f"s_load_dwordx8 s[32:39], {sTBL}, {sDOFF}")
    g.e(f"s_mov_b32 {sTHR}, {f2u(THR):#x}")
    g.e(f"s_mov_b32 {sC0}, {f2u(CSCALE):#x}")
    g.e(f"s_mov_b32 {sC1}, {f2u(CSCALE):#x}")
    g.e("v_and_b32 v1, 31, v0")
    g.e("v_lshrrev_b32 v2, 5, v0")
    g.e("v_lshrrev_b32 v3, 4, v0")
    g.e("v_and_b32 v4, 15, v0")
    g.e(f"v_lshlrev_b32 v{VQO}, 12, v1")
    g.e(f"v_lshl_add_u32 v{VQO}, v2, 4, v{VQO}")
    g.e(f"v_lshlrev_b32 v{VLANE16}, 4, v0")
    g.e(f"v_lshlrev_b32 v{VHI4}, 2, v2")
    for i in range(4):
        g.e(f"v_add_u32 v5, {4*i}, v3")
        g.e(f"v_xor_b32 v6, v4, v5")
        g.e(f"v_lshlrev_b32 v7, 12, v5")
        g.e(f"v_lshl_add_u32 v{VDK+i}, v6, 4, v7")
        g.e(f"v_lshlrev_b32 v6, 2, v3")
        g.e(f"v_xor_b32 v6, v4, v6")
        g.e(f"v_lshl_add_u32 v{VDV+i}, v6, 4, v7")
        if i:
            g.e(f"v_subrev_u32 v{VDK+i}, {1024*i}, v{VDK+i}")
            g.e(f"v_subrev_u32 v{VDV+i}, {1024*i}, v{VDV+i}")
    g.e("s_waitcnt lgkmcnt(0)")
    for srd, src, nrec in ((4, 64, None), (8, 66, None), (12, 68, None), (16, 72, None), (20, 76, 268435456), (24, 74, 256)):
        g.e(f"s_mov_b32 s{srd}, s{src}")
        g.e(f"s_and_b32 s{srd+1}, s{src+1}, 0xffff")
        g.e(f"s_mov_b32 s{srd+2}, {nrec if nrec else 0}")
        g.e(f"s_mov_b32 s{srd+3}, 0x00020000")
    g.e(f"s_mov_b32 {sSTAMP}, 0x8000000")
    g.e(f"s_mov_b32 {sPEND}, 0")
    stamp(g, 0)
    rstamp(g, 30)
    g.e(f"s_call_b64 {sRET}, L_setup")
    g.e("s_branch L_seg")
    g.label("L_setup")
    for srd in (4, 8, 12): g.e(f"s_mov_b32 s{srd+2}, {sNREC}")
    g.e(f"s_and_b32 {sT0}, {sWAVE}, 1")
    g.e(f"s_cmp_eq_u32 {sT0}, 1")
    g.e(f"s_cselect_b32 {sROLE}, {sROLE1}, {sROLE0}")
    g.e(f"s_lshl_b32 {sT1}, {sT0}, 18")
    g.e(f"s_add_u32 {sQOFF}, {sQOFF}, {sT1}")
    g.e(f"s_and_b32 {sCNT}, {sINFO}, 0xff")
    g.e(f"s_bfe_u32 {sMODE}, {sINFO}, 0x80008")
    g.e(f"s_bfe_u32 {sLO}, {sINFO}, 0x80010")
    g.e(f"s_lshr_b32 {sSPAN}, {sINFO}, 24")
    g.e(f"s_sub_u32 {sSPAN}, {sSPAN}, {sLO}")
    g.e(f"s_lshl_b32 {sT1}, {sWAVE}, 4")
    g.e(f"s_lshl_b32 {sT2}, {sT0}, 5")
    g.e(f"s_lshr_b32 {sT3}, {sWAVE}, 1")
    g.e(f"s_lshl_b32 {sT3}, {sT3}, 16")
    g.e(f"s_cmp_eq_u32 {sMODE}, 0")
    g.e(f"s_cselect_b32 {sT1}, {sT1}, {sT2}")
    g.e(f"s_cselect_b32 {sG}, 0, {sT3}")
    g.e(f"s_lshl_b32 {sROWOFF}, {sT1}, 12")
    g.e(f"s_lshl_b32 {sLDSD}, {sT1}, 8")
    g.e(f"s_add_u32 {sLDSD}, {sLDSD}, {sG}")
    g.e(f"s_add_u32 {sFIRST}, {sFIRST}, {sROWOFF}")
    g.e(f"s_add_u32 {sVN}, {sNEXT}, {sROWOFF}")
    g.e(f"s_add_u32 {sKN}, {sVN}, {TILEB}")
    g.e(f"s_sub_u32 {sCHK}, {sNEXT}, {TILEB}")
    g.e(f"s_cmp_eq_u32 {sMODE}, 0")
    g.e("s_cbranch_scc0 L_setB")
    def dma(mode, which, buf, soff):
        for ins in dma_list(mode, which, buf, soff):
            g.e(ins)
            if "m0" in ins: g.e("s_nop 0")
    for mode in (0, 1):
        if mode == 1: g.label("L_setB")
        dma(mode, 'K', 0, sFIRST)
        for blk in (0, 1):
            g.e(f"s_add_u32 {sT2}, {sQOFF}, {blk*32*ROWB}")
            for ks in range(8):
                g.e(f"buffer_load_dwordx4 {a4(Q_(blk, ks))}, v{VQO}, {SQ}, {sT2} offen offset:{ks*32}")
        dma(mode, 'K', 1, sVN)
        g.e(f"s_setpc_b64 {sRET}")
    g.label("L_seg")
    g.e(f"s_mov_b32 s18, {sNREC}")
    g.e(f"s_add_u32 {sDOFF}, {sDOFF}, 64")
    g.e(f"s_load_dwordx8 s[64:71], {sTBL}, {sDOFF}")
    g.e("s_barrier")
    g.e(f"s_cmp_eq_u32 {sMODE}, 0")
    g.e("s_cbranch_scc0 L_vB")
    dma(0, 'V', 0, sFIRST)
    g.e("s_branch L_vJ")
    g.label("L_vB")
    dma(1, 'V', 0, sFIRST)
    g.label("L_vJ")
    g.e(f"v_lshrrev_b32 v0, 4, v{VLANE16}")
    g.e("v_and_b32 v1, 31, v0")
    g.e("v_lshrrev_b32 v2, 5, v0")
    g.e("v_and_b32 v4, 15, v0")
    g.e(f"v_lshlrev_b32 v5, 8, v1")
    g.e(f"v_add_u32 v5, {sG}, v5")
    for ks in range(8):
        g.e(f"v_add_u32 v6, {2*ks}, v2")
        g.e(f"v_xor_b32 v6, v6, v4")
        g.e(f"v_lshl_add_u32 v{VKA+ks}, v6, 4, v5")
    g.e("v_lshrrev_b32 v3, 2, v4")
    g.e("v_lshl_add_u32 v5, v2, 2, v3")
    g.e("v_lshlrev_b32 v5, 8, v5")
    g.e(f"v_add_u32 v5, {sG}, v5")
    g.e("v_and_b32 v6, 1, v0")
    g.e("v_lshl_add_u32 v5, v6, 3, v5")
    g.e("v_bfe_u32 v6, v0, 1, 1")
    g.e("v_bfe_u32 v7, v0, 4, 1")
    g.e("v_lshl_add_u32 v6, v7, 1, v6")
    g.e("v_lshl_add_u32 v5, v6, 4, v5")
    for db in range(4):
        g.e(f"v_xor_b32 v6, {db}, v3")
        g.e(f"v_lshl_add_u32 v{VVA+db}, v6, 6, v5")
    for r in range(4): g.e(f"v_mov_b32 v{8+r}, 0")
    g.e(f"v_mov_b32 v{VL}, 0"); g.e(f"v_mov_b32 v{VL+1}, 0")
    g.e(f"s_lshr_b32 {sT2}, {sROLE}, 9")
    g.e(f"s_lshl_b32 {sT2}, {sT2}, 2")
    g.e(f"v_mov_b32 v{VFADDR}, {sT2}")
    g.e(f"v_mov_b32 v{VFLAG}, 0")
    g.e(f"s_and_b32 {sT2}, {sROLE}, 3")
    g.e(f"s_cmp_eq_u32 {sT2}, 2")
    g.e(f"s_cselect_b32 {sPOLLAT}, 1, 0xffff")
    for i in range(8): g.e(f"v_mfma_f32_32x32x16_bf16 {a16(16*i)}, v[8:11], v[8:11], 0")
    g.e(f"s_cmp_eq_u32 {sMODE}, 0")
    g.e("s_cbranch_scc0 L_qB")
    for mode in (0, 1):
        nd = 8 if mode == 0 else 16
        if mode == 1: g.label("L_qB")
        g.e(f"s_waitcnt vmcnt({16+nd})")
        g.e("s_barrier")
        for c in range(16): g.e(k_read(c, 0)[0])
        for blk in (0, 1):
            for ks in range(8):
                i = blk * 8 + ks
                g.e(f"s_waitcnt vmcnt({15-i+nd})")
                x = 64 + (i % 2) * 4
                for r in range(4):
                    t = 72 + 2 * r + (i % 2) * 8
                    g.e(f"v_accvgpr_read_b32 v{t+1}, a{Q_(blk, ks)+r}")
                for r in range(4):
                    t = 72 + 2 * r + (i % 2) * 8
                    g.e(f"v_lshlrev_b32 v{t}, 16, v{t+1}")
                    g.e(f"v_and_b32 v{t+1}, 0xffff0000, v{t+1}")
                    g.e(f"v_mul_f32 v{t}, {sC0}, v{t}")
                    g.e(f"v_mul_f32 v{t+1}, {sC0}, v{t+1}")
                    g.e(f"v_cvt_pk_bf16_f32 v{x+r}, v{t}, v{t+1}")
                for r in range(4):
                    g.e(f"v_accvgpr_write_b32 a{Q_(blk, ks)+r}, v{x+r}")
                if i == 0: g.e("s_waitcnt lgkmcnt(0)")
                for kb in (0, 1):
                    d = S_(0, blk, kb)
                    g.e(f"v_mfma_f32_32x32x16_bf16 {v16(d)}, {a4(RING(kb*8+ks))}, {v4(x)}, {'0' if ks == 0 else v16(d)}")
        if mode == 0: g.e("s_branch L_qJ")
    g.label("L_qJ")
    stamp(g, 1)
    g.e("s_waitcnt vmcnt(0)")
    g.e("s_barrier")
    for c in range(LOOK): g.e(k_read(c, 1)[0])
    publish(g, "seg")
    g.nop(8)
    g.e(f"s_cmp_eq_u32 {sSPAN}, 64")
    g.e("s_cbranch_scc1 L_nomask")
    g.e(f"v_subrev_u32 v{VT}, {sLO}, v{VHI4}")
    g.e(f"v_mov_b32 v{VT+1}, 0xff800000")
    for kb in (0, 1):
        for r0 in range(0, 16, 4):
            for r in range(r0, r0 + 4):
                kc = 32 * kb + 8 * (r // 4) + r % 4
                g.e(f"v_add_u32 v{VT+2+r%4}, {kc}, v{VT}")
                g.e(f"v_cmp_gt_u32 s[{88+2*(r%4)}:{89+2*(r%4)}], {sSPAN}, v{VT+2+r%4}")
            g.e("s_nop 1")
            for r in range(r0, r0 + 4):
                for blk in (0, 1):
                    x = S_(0, blk, kb) + r
                    g.e(f"v_cndmask_b32 v{x}, v{VT+1}, v{x}, s[{88+2*(r%4)}:{89+2*(r%4)}]")
    g.label("L_nomask")
    mx = [NEGM(0), NEGM(1)]
    for blk in (0, 1): rowmax(g, 0, blk, mx[blk])
    crosshalf(g, "v_max_f32", mx, [VT + 2, VT + 3])
    for blk in (0, 1):
        g.e(f"v_sub_f32 v{NEGM(blk)}, 0, v{NEGM(blk)}")
    for r in range(1, 16):
        for blk in (0, 1): g.e(f"v_mov_b32 v{NEGM(blk)+r}, v{NEGM(blk)}")
    g.e(f"s_sub_u32 {sCNT}, {sCNT}, 1")
    stamp(g, 2)
    def subs(kb):
        return [f"v_add_f32 v{S_(0, blk, kb)+r}, v{S_(0, blk, kb)+r}, v{NEGM(blk)}" for blk in (0, 1) for r in range(16)]
    first_stream = subs(0) + softmax_stream(0, 0) + subs(1) + softmax_stream(0, 1)
    g.e(f"s_cmp_eq_u32 {sMODE}, 0")
    g.e("s_cbranch_scc0 L_p1B")
    phase1(g, 0, 0, first_stream, LdsTrack(list(range(LOOK))), check=False)
    g.e("s_branch L_back_A0")
    g.label("L_p1B")
    phase1(g, 1, 0, first_stream, LdsTrack(list(range(LOOK))), check=False)
    g.e("s_branch L_back_B0")
    for mode, nm in ((0, "A"), (1, "B")):
        L.append(".p2align 6")
        g.label(f"L_loop{nm}")
        loop_body(g, mode, 0, f"{nm}0")
        g.e("s_cbranch_scc1 L_tail1")
        loop_body(g, mode, 1, f"{nm}1")
        g.e(f"s_cbranch_scc0 L_loop{nm}")
        g.e("s_branch L_tail0")
    g.label("L_tail1")
    stamp(g, 3)
    tail(g, 1, "T1")
    g.label("L_tail0")
    stamp(g, 3)
    tail(g, 0, "T0")
    g.label("L_epiaddr")
    g.e(f"v_lshrrev_b32 v{VT}, 4, v{VLANE16}")
    g.e(f"s_lshl_b32 {sT3}, {sWAVE}, 13")
    g.e(f"s_add_u32 {sT3}, {sT3}, {EPI}")
    g.e(f"v_and_b32 v{VT+1}, 31, v{VT}")
    g.e(f"v_lshlrev_b32 v{VEW}, 7, v{VT+1}")
    g.e(f"v_lshl_add_u32 v{VEW}, v{VHI4}, 1, v{VEW}")
    g.e(f"v_and_b32 v{VT+1}, 7, v{VT}")
    g.e(f"v_lshl_add_u32 v{VEW}, v{VT+1}, 4, v{VEW}")
    g.e(f"v_add_u32 v{VEW}, {sT3}, v{VEW}")
    g.e(f"v_lshrrev_b32 v{VT+2}, 3, v{VT}")
    g.e(f"v_xor_b32 v{VT+3}, v{VT+1}, v{VT+2}")
    g.e(f"v_lshlrev_b32 v{VER}, 7, v{VT+2}")
    g.e(f"v_lshl_add_u32 v{VER}, v{VT+3}, 4, v{VER}")
    g.e(f"v_add_u32 v{VER}, {sT3}, v{VER}")
    g.e(f"v_mov_b32 v{VER+1}, v{VER}")
    g.e(f"v_lshlrev_b32 v{VES}, 12, v{VT+2}")
    g.e(f"v_lshl_add_u32 v{VES}, v{VT+1}, 4, v{VES}")
    g.e(f"s_setpc_b64 {sRET}")
    g.label("L_epi_done")
    stamp(g, 4)
    g.e(f"s_bitcmp1_b32 {sOFLAGS}, 0")
    g.e("s_cbranch_scc1 L_seg")
    g.e("s_waitcnt vmcnt(0)")
    publish(g, "end")
    rstamp(g, 31)
    g.label("L_end")
    g.e("s_endpgm")
    for tag, cb in (("A0", 0), ("A1", 1), ("B0", 0), ("B1", 1), ("T0", 0), ("T1", 1)):
        g.label(f"L_stub_{tag}")
        g.e(f"s_call_b64 {sRET}, L_slow_{cb}")
        g.e(f"s_branch L_back_{tag}")
    for pid in POLLS:
        g.label(f"L_pollstub_{pid}")
        g.e(f"buffer_load_dword v{VFLAG}, v{VFADDR}, {SD}, 0 offen sc1")
        g.e(f"s_branch L_pollback_{pid}")
    slow_path(g, 0)
    slow_path(g, 1)
    g.label("L_codeend")
    L.append('.section .rodata,"a"')
    L.append(".p2align 6")
    L.append(f""".amdhsa_kernel {NAME}_kernel
  .amdhsa_next_free_vgpr 512
  .amdhsa_next_free_sgpr 102
  .amdhsa_accum_offset 256
  .amdhsa_group_segment_fixed_size 0
  .amdhsa_kernarg_size 56
  .amdhsa_user_sgpr_count 2
  .amdhsa_user_sgpr_kernarg_segment_ptr 1
  .amdhsa_system_sgpr_workgroup_id_x 1
.end_amdhsa_kernel""")
    L.append(".p2align 8")
    L.append("L_table:")
    for i in range(0, len(table), 8):
        L.append(".long " + ",".join(str(x) for x in table[i:i+8]))
    L.append(".long 0,0,0,0,0,0,0,0,0,0,0,0,0,0,0,0")
    return "\n".join(L) + "\n"

if __name__ == "__main__":
    out = sys.argv[1] if len(sys.argv) > 1 else f"cdna_kernels/{NAME}.s"
    s = gen()
    open(out, "w").write(s)
    print("wrote", out, len(s), "bytes")
```
